```python
import torch

def _softmax(x, axis=-1):
    return torch.softmax(x, dim=axis)
def _gelu(x):
    return torch.nn.functional.gelu(x, approximate="tanh")
def _silu(x):
    return torch.nn.functional.silu(x)
def _sigmoid(x):
    return torch.sigmoid(x)
def _layernorm(x, axis=-1, eps=1e-5):
    m = x.mean(dim=axis, keepdim=True)
    v = x.var(dim=axis, keepdim=True, unbiased=False)
    return (x - m) / torch.sqrt(v + eps)
def _scatter_add(tgt, idx, src, axis=0):
    return tgt.clone().index_add_(axis, idx, src)
def _segment_sum(src, seg, n):
    out = torch.zeros((n,) + src.shape[1:], dtype=src.dtype)
    return out.index_add_(0, seg, src)
def _pad(x, pw):
    flat = tuple(v for pair in reversed(pw) for v in pair)
    return torch.nn.functional.pad(x, flat)

kernel_name = 'sequential_preLN__spectral_gfnet__glu_gated_glu__prompt'

def setup_inputs():

    _w = (lambda a: (lambda t: t.to(torch.bfloat16) if t.is_floating_point() else t)(torch.as_tensor(a)))
    def _A_setup():
        B, S, D = 1, 2048, 448
        Df = D // 2 + 1
        return {
            "x": _w((lambda *s: torch.randn(*s, dtype=torch.bfloat16) * 0.05)(B, S, D)),
            "w_r": _w((lambda *s: torch.randn(*s, dtype=torch.bfloat16) * 0.4)(S, Df) * 0.02),
            "w_i": _w((lambda *s: torch.randn(*s, dtype=torch.bfloat16) * 0.4)(S, Df) * 0.02),
        }
    _A_in = _A_setup()

    def _B_setup():
        B, S, D, F = 1, 2048, 448, 1792
        return {
            "x": _w((lambda *s: torch.randn(*s, dtype=torch.bfloat16) * 0.05)(B, S, D)),
            "w_gate": _w((lambda *s: torch.randn(*s, dtype=torch.bfloat16) * 0.05)(D, F)),
            "w_up": _w((lambda *s: torch.randn(*s, dtype=torch.bfloat16) * 0.05)(D, F)),
            "w_down": _w((lambda *s: torch.randn(*s, dtype=torch.bfloat16) * 0.05)(F, D)),
        }
    _B_in = _B_setup()

    return {
        "A_x": _A_in["x"],
        "A_w_r": _A_in["w_r"],
        "A_w_i": _A_in["w_i"],
        "B_x": _B_in["x"],
        "B_w_gate": _B_in["w_gate"],
        "B_w_up": _B_in["w_up"],
        "B_w_down": _B_in["w_down"],
    }

def reference(A_x, A_w_r, A_w_i, B_x, B_w_gate, B_w_up, B_w_down):
    def _A_ref(x, w_r, w_i):
        B, S, D = x.shape
        X = (lambda x, axes=(-2,-1): torch.fft.rfft2(x.float(), dim=axes))(x, axes=(-2, -1))
        W = w_r + 1j * w_i
        X = X * W
        y = (lambda x, s, axes=(-2,-1): torch.fft.irfft2(x, s=s, dim=axes).to(torch.bfloat16))(X, (S, D), axes=(-2, -1))
        return y

    def _B_ref(x, w_gate, w_up, w_down):
        g = torch.einsum("bsd,df->bsf", x, w_gate)
        u = torch.einsum("bsd,df->bsf", x, w_up)
        h = _sigmoid(g) * u
        return torch.einsum("bsf,fd->bsd", h, w_down)

    x = A_x
    h = x + _A_ref(_layernorm(x, axis=-1), A_w_r, A_w_i)
    h2 = h + _B_ref(_layernorm(h, axis=-1), B_w_gate, B_w_up, B_w_down)
    return h2
```

```python
import re

REG_RE = re.compile(r'^(-|abs\()?\s*([vas])(\d+|\[(\d+):(\d+)\])\)?$')

def parse_reg(tok):
    t = tok.strip()
    if t.startswith('-'):
        t = t[1:]
    if t.startswith('abs(') and t.endswith(')'):
        t = t[4:-1]
    if t.startswith('|') and t.endswith('|'):
        t = t[1:-1]
    if t == 'vcc':
        return ('s', 106, 107)
    if t == 'vcc_lo':
        return ('s', 106, 106)
    if t == 'vcc_hi':
        return ('s', 107, 107)
    if t == 'exec':
        return ('s', 126, 127)
    if t == 'm0':
        return ('s', 124, 124)
    m = re.match(r'^([vas])(\d+)$', t)
    if m:
        return (m.group(1), int(m.group(2)), int(m.group(2)))
    m = re.match(r'^([vas])\[(\d+):(\d+)\]$', t)
    if m:
        return (m.group(1), int(m.group(2)), int(m.group(3)))
    return None

def regset(r):
    k, lo, hi = r
    return {(k, i) for i in range(lo, hi + 1)}

TRANS = ('v_exp_f32', 'v_log_f32', 'v_rcp_f32', 'v_rsq_f32', 'v_sqrt_f32', 'v_sin_f32', 'v_cos_f32', 'v_rcp_iflag_f32')

class Inst:
    __slots__ = ('text', 'op', 'reads', 'writes', 'cls', 'passes', 'srcC', 'dst', 'ab', 'dpp', 'perm', 'rdlane',
                 'wide_store_data', 'trans', 'states', 'lds_dma', 'sgpr_reads_valu', 'is_load')

def split_operands(s):
    out, depth, cur = [], 0, ''
    for ch in s:
        if ch in '[(':
            depth += 1
        if ch in '])':
            depth -= 1
        if ch == ',' and depth == 0:
            out.append(cur.strip()); cur = ''
        else:
            cur += ch
    if cur.strip():
        out.append(cur.strip())
    return out

def analyze(text):
    I = Inst()
    I.text = text
    t = text.strip()
    sp = t.split(None, 1)
    op = sp[0]
    rest = sp[1] if len(sp) > 1 else ''
    I.op = op
    I.reads = set(); I.writes = set(); I.cls = 'other'; I.passes = 0; I.srcC = None; I.dst = None; I.ab = set()
    I.dpp = False; I.perm = False; I.rdlane = False; I.wide_store_data = set(); I.trans = False; I.states = 1
    I.lds_dma = False; I.is_load = False
    ops = split_operands(rest)
    toks = []
    mods = ''
    for i, o in enumerate(ops):
        parts = o.split()
        if i == len(ops) - 1 and len(parts) > 1:
            toks.append(parts[0]); mods = ' '.join(parts[1:])
        else:
            if len(parts) > 1:
                toks.append(parts[0]); mods += ' ' + ' '.join(parts[1:])
            else:
                toks.append(o)
    regs = [parse_reg(x) for x in toks]
    def R(i):
        return regset(regs[i]) if i < len(regs) and regs[i] else set()
    if op == 's_nop':
        I.cls = 'nop'; I.states = int(toks[0], 0) + 1
        return I
    if op.startswith('v_mfma'):
        I.cls = 'mfma'
        I.passes = 8 if '32x32x16' in op else 4
        I.dst = regs[0]; I.writes = R(0)
        I.ab = R(1) | R(2)
        I.srcC = regs[3]
        I.reads = R(1) | R(2) | R(3)
        return I
    if op.startswith('v_'):
        I.cls = 'valu'
        I.trans = op.replace('_e32', '').replace('_e64', '') in TRANS
        if 'dpp' in op or 'row_' in mods or 'quad_perm' in mods:
            I.dpp = True
        if op.startswith('v_permlane'):
            I.perm = True
            I.reads = R(0) | R(1); I.writes = R(0) | R(1)
            return I
        if op.startswith('v_readfirstlane') or op.startswith('v_readlane'):
            I.rdlane = True
            I.writes = R(0); I.reads = set().union(*[R(i) for i in range(1, len(regs))])
            return I
        if op.startswith('v_cmp'):
            I.writes = R(0); I.reads = set().union(*[R(i) for i in range(1, len(regs))])
            return I
        if op.startswith('v_add_co') or op.startswith('v_sub_co') or op.startswith('v_addc_co') or op.startswith('v_subb_co'):
            I.writes = R(0) | R(1); I.reads = set().union(*[R(i) for i in range(2, len(regs))])
            return I
        I.writes = R(0)
        I.reads = set().union(*[R(i) for i in range(1, len(regs))]) if len(regs) > 1 else set()
        if op.startswith('v_fmac') or op.startswith('v_dot2c') or op.startswith('v_pk_fmac') or I.dpp:
            I.reads |= R(0)
        return I
    if op.startswith('buffer_') or op.startswith('global_'):
        I.cls = 'vmem'
        if op in ('buffer_wbl2', 'buffer_inv'):
            return I
        lds = (' lds' in (' ' + mods)) or ('_lds_' in op)
        if lds:
            I.lds_dma = True
            I.reads = set().union(*[R(i) for i in range(len(regs))]) | {('s', 124)}
            return I
        if '_load' in op:
            I.is_load = True
            I.writes = R(0)
            I.reads = set().union(*[R(i) for i in range(1, len(regs))])
            if 'd16' in op:
                I.reads |= R(0)
        elif '_store' in op:
            I.reads = set().union(*[R(i) for i in range(len(regs))])
            if 'x4' in op or 'x3' in op:
                di = 0 if op.startswith('buffer_') else 1
                I.wide_store_data = R(di)
        elif 'atomic' in op:
            I.reads = set().union(*[R(i) for i in range(len(regs))])
            if 'sc0' in mods:
                I.writes = R(0)
        return I
    if op.startswith('ds_'):
        I.cls = 'ds'
        if op.startswith('ds_read') or op.startswith('ds_bpermute') or op.startswith('ds_swizzle') or op.startswith('ds_permute'):
            I.is_load = True
            I.writes = R(0); I.reads = set().union(*[R(i) for i in range(1, len(regs))])
            if 'd16' in op:
                I.reads |= R(0)
        else:
            I.reads = set().union(*[R(i) for i in range(len(regs))])
            if 'b128' in op or 'b96' in op:
                I.wide_store_data = R(1)
        return I
    if op.startswith('s_'):
        I.cls = 'salu'
        if op.startswith('s_cmp') or op.startswith('s_cbranch') or op.startswith('s_branch') or op in (
                's_waitcnt', 's_barrier', 's_endpgm', 's_setprio', 's_sleep'):
            I.reads = set().union(*[R(i) for i in range(len(regs))]) if regs else set()
            return I
        I.writes = R(0)
        I.reads = set().union(*[R(i) for i in range(1, len(regs))]) if len(regs) > 1 else set()
        if 'saveexec' in op:
            I.writes |= {('s', 126), ('s', 127)}
        return I
    raise ValueError('unknown instruction: ' + text)

def need_between(P, C):
    n = 0
    if P.cls == 'valu':
        vw = {r for r in P.writes if r[0] in 'va'}
        sw = {r for r in P.writes if r[0] == 's'}
        if C.cls == 'mfma' and (vw & C.reads):
            n = max(n, 2)
        if C.cls == 'valu':
            if (C.dpp or C.perm) and (vw & C.reads):
                n = max(n, 2)
            if C.rdlane and (vw & C.reads):
                n = max(n, 1)
            if sw & C.reads:
                n = max(n, 4 if C.rdlane else 2)
        if P.trans and (vw & C.reads) and not (C.cls == 'valu' and C.trans):
            n = max(n, 1)
        if C.cls in ('vmem',) and (sw & C.reads):
            n = max(n, 5)
        if C.cls == 'salu' and (sw & C.reads):
            n = max(n, 2)
        if ('s', 126) in sw:
            n = max(n, 5)
        if P.op.startswith('v_dot') and (vw & (C.reads | C.writes)):
            same_acc = (C.op == P.op and C.text.split(',')[-1].strip() == P.text.split(None, 1)[1].split(',')[0].strip()
                        and not (vw & set().union(*[regset(parse_reg(x.strip())) for x in C.text.split(None, 1)[1].split(',')[1:3] if parse_reg(x.strip())])))
            if not same_acc:
                n = max(n, 3)
    if P.cls == 'mfma':
        big = 12 if P.passes == 8 else 8
        ovl = 10 if P.passes == 8 else 6
        if C.cls == 'mfma':
            if P.writes & C.ab:
                n = max(n, big)
            if C.srcC is not None and (P.writes & regset(C.srcC)):
                if C.srcC == P.dst and C.passes == P.passes:
                    pass
                else:
                    n = max(n, ovl)
            elif P.writes & C.writes:
                n = max(n, ovl)
        else:
            if P.writes & (C.reads | C.writes):
                n = max(n, big)
        if P.srcC is not None and C.cls != 'mfma' and (regset(P.srcC) & C.writes):
            n = max(n, 7 if P.passes == 8 else 3)
    if P.cls == 'salu' and ('s', 124) in P.writes and C.lds_dma:
        n = max(n, 1)
    if P.wide_store_data and (P.wide_store_data & C.writes):
        n = max(n, 2)
    return n

class Asm:
    def __init__(self):
        self.lines = []
        self.hist = []
        self.vm_issued = 0
        self.lg_issued = 0
        self.nops = 0
        self.ninst = 0
    def raw(self, s):
        self.lines.append(s)
    def comment(self, s):
        self.lines.append('    ; ' + s)
    def label(self, name):
        self.emit('s_nop 7'); self.emit('s_nop 3')
        self.lines.append(name + ':')
        self.hist = []
    def label_nopad(self, name):
        self.lines.append(name + ':')
    def reset(self):
        self.hist = []; self.vm_issued = 0; self.lg_issued = 0
    def emit(self, text):
        I = analyze(text)
        dist = 0; need = 0
        for P in reversed(self.hist):
            req = need_between(P, I)
            if req > dist:
                need = max(need, req - dist)
            dist += P.states
            if dist >= 16:
                break
        while need > 0:
            k = min(need, 16)
            N = analyze('s_nop %d' % (k - 1))
            self.hist.append(N); self.lines.append('    s_nop %d' % (k - 1)); self.nops += 1
            need -= k
        self.hist.append(I)
        if len(self.hist) > 40:
            self.hist = self.hist[-24:]
        self.lines.append('    ' + text)
        self.ninst += 1
        tk = None
        if I.cls == 'vmem' and I.op not in ('buffer_wbl2', 'buffer_inv'):
            tk = self.vm_issued; self.vm_issued += 1
        elif I.cls == 'ds':
            tk = self.lg_issued; self.lg_issued += 1
        return tk
    __call__ = emit
    def wait_vm(self, ticket):
        n = self.vm_issued - ticket - 1
        assert n >= 0
        self.emit('s_waitcnt vmcnt(%d)' % min(n, 63))
    def wait_lg(self, ticket):
        n = self.lg_issued - ticket - 1
        assert n >= 0
        self.emit('s_waitcnt lgkmcnt(%d)' % min(n, 15))
    def text(self):
        return '\n'.join(self.lines) + '\n'

class Regs:
    def __init__(self, kind, start, limit):
        self.kind = kind; self.next = start; self.limit = limit; self.hi = start
    def alloc(self, n=1, align=None):
        if align is None:
            align = 1 if n == 1 else (2 if n < 4 else 4)
        b = (self.next + align - 1) // align * align
        self.next = b + n
        self.hi = max(self.hi, self.next)
        assert self.next <= self.limit, 'out of %s regs' % self.kind
        return b
    def mark(self):
        return self.next
    def release(self, m):
        self.next = m

def v(i, n=1):
    return 'v%d' % i if n == 1 else 'v[%d:%d]' % (i, i + n - 1)
def a(i, n=1):
    return 'a%d' % i if n == 1 else 'a[%d:%d]' % (i, i + n - 1)
def s(i, n=1):
    return 's%d' % i if n == 1 else 's[%d:%d]' % (i, i + n - 1)

import struct
def f32(x):
    return '0x%08x' % struct.unpack('<I', struct.pack('<f', x))[0]
```

```python
import sys, math
from asmdsl import *

NAME = 'sequential_preLN__spectral_gfnet__glu_gated_glu__prompt'
S_, D_, F_ = 2048, 448, 1792
WS_A1 = 0x000000; SZ_A1 = 0x200000
WS_Z2 = 0x200000; SZ_Z2 = 0x200000
WS_H  = 0x400000; SZ_H = S_ * D_ * 2
WS_WG = 0x600000; SZ_W = D_ * F_ * 2
WS_WU = 0x800000
WS_WD = 0xA00000
WS_CS = 0xC00000; SZ_CS = 2 * F_ * 4
WS_HP = 0xD00000; SZ_HP = S_ * F_ * 2
OOB = 0x40000000
KA_X, KA_WR, KA_WI, KA_BX, KA_WG, KA_WU, KA_WD, KA_OUT, KA_DBG, KA_WS = [8 * i for i in range(10)]

kernels = []

def srd(A, d, base, off, size):
    if off:
        A('s_add_u32 %s, %s, 0x%x' % (s(d), s(base), off))
        A('s_addc_u32 %s, %s, 0' % (s(d + 1), s(base + 1)))
    else:
        A('s_mov_b32 %s, %s' % (s(d), s(base)))
        A('s_mov_b32 %s, %s' % (s(d + 1), s(base + 1)))
    A('s_mov_b32 %s, 0x%x' % (s(d + 2), size))
    A('s_mov_b32 %s, 0x00020000' % s(d + 3))

def round_bf16(A, dst, src):
    A('v_cvt_pk_bf16_f32 %s, %s, %s' % (v(dst), v(src), v(src)))
    A('v_lshlrev_b32 %s, 16, %s' % (v(dst), v(dst)))

def allreduce16(A, regs, tmp=None):
    for mod in ('quad_perm:[1,0,3,2]', 'quad_perm:[2,3,0,1]', 'row_half_mirror', 'row_mirror'):
        for r in regs:
            A('v_add_f32_dpp %s, %s, %s %s row_mask:0xf bank_mask:0xf' % (v(r), v(r), v(r), mod))

def allreduce32(A, regs, tmps):
    allreduce16(A, regs)
    for r, t in zip(regs, tmps):
        A('v_mov_b32 %s, %s' % (v(t), v(r)))
    for r, t in zip(regs, tmps):
        A('v_permlane16_swap_b32 %s, %s' % (v(r), v(t)))
    for r, t in zip(regs, tmps):
        A('v_add_f32 %s, %s, %s' % (v(r), v(r), v(t)))

def ln_scalars(A, vsum_mean, vvar, tmp):
    round_bf16(A, vvar, vvar)
    A('v_add_f32 %s, %s, %s' % (v(vvar), f32(1e-5), v(vvar)))
    round_bf16(A, vvar, vvar)
    A('v_sqrt_f32 %s, %s' % (v(vvar), v(vvar)))
    round_bf16(A, vvar, vvar)
    A('v_rcp_f32 %s, %s' % (v(vvar), v(vvar)))

def gen_rowdft_frags(A, V, vIdxF, vG, negsin, Cf, Sf, swap_roles):
    m = V.mark()
    off = V.alloc(8, 2); base = V.alloc(1); q = V.alloc(1); t0 = V.alloc(2, 2); c0 = V.alloc(2, 2); s0 = V.alloc(2, 2)
    slot0 = V.alloc(1)
    inv = 1.0 / 896.0
    for j in range(8):
        mult = (2 * j if not swap_roles else j) * inv
        A('v_mul_f32 %s, %s, %s' % (v(off + j), f32(mult), v(vIdxF)))
    if not swap_roles:
        A('v_fma_f32 %s, %s, %s, 1.0' % (v(slot0), v(vG), 's[SIXTEEN]'.replace('s[SIXTEEN]', s(SC16))))
    else:
        A('v_mul_f32 %s, %s, %s' % (v(slot0), f32(8.0), v(vG)))
    for ks in range(7):
        add = 64.0 * ks if not swap_roles else 32.0 * ks
        A('v_add_f32 %s, %s, %s' % (v(base), f32(add), v(slot0)))
        A('v_mul_f32 %s, %s, %s' % (v(base), v(base), v(vIdxF)))
        A('v_mul_f32 %s, %s, %s' % (v(q), f32(inv), v(base)))
        A('v_floor_f32 %s, %s' % (v(q), v(q)))
        A('v_fma_f32 %s, %s, %s, %s' % (v(base), v(q), s(SCM896), v(base)))
        A('v_mul_f32 %s, %s, %s' % (v(base), f32(inv), v(base)))
        for jp in range(4):
            A('v_add_f32 %s, %s, %s' % (v(t0), v(base), v(off + 2 * jp)))
            A('v_add_f32 %s, %s, %s' % (v(t0 + 1), v(base), v(off + 2 * jp + 1)))
            A('v_cos_f32 %s, %s' % (v(c0), v(t0)))
            A('v_cos_f32 %s, %s' % (v(c0 + 1), v(t0 + 1)))
            A('v_sin_f32 %s, %s' % (v(s0), v(t0)))
            A('v_sin_f32 %s, %s' % (v(s0 + 1), v(t0 + 1)))
            A('v_cvt_pk_bf16_f32 %s, %s, %s' % (v(Cf + 4 * ks + jp), v(c0), v(c0 + 1)))
            ng = '-' if negsin else ''
            A('v_cvt_pk_bf16_f32 %s, %s%s, %s%s' % (v(Sf + 4 * ks + jp), ng, v(s0), ng, v(s0 + 1)))
    V.release(m)

SC16 = 90; SCM896 = 91
LP = 544

def gen_k1():
    A = Asm(); V = Regs('v', 1, 256)
    A('s_cmp_ge_u32 s2, 256')
    A('s_cbranch_scc1 K1_END')
    A('s_load_dwordx2 s[4:5], s[0:1], %d' % KA_X)
    A('s_load_dwordx2 s[6:7], s[0:1], %d' % KA_WS)
    vL = V.alloc(); vT = V.alloc(); vT2 = V.alloc()
    A('v_and_b32 %s, 63, v0' % v(vL))
    A('v_lshrrev_b32 %s, 6, v0' % v(vT))
    A('v_readfirstlane_b32 s20, %s' % v(vT))
    A('s_and_b32 s21, s2, 63')
    A('s_lshr_b32 s22, s2, 6')
    A('s_lshl_b32 s23, s22, 2')
    A('s_add_u32 s23, s23, s20')
    A('s_mov_b32 %s, %s' % (s(SC16), f32(16.0)))
    A('s_mov_b32 %s, %s' % (s(SCM896), f32(-896.0)))
    vJ = V.alloc(); vHH = V.alloc(); vOA = V.alloc(); vOB = V.alloc(); vMask = V.alloc()
    A('v_and_b32 %s, 31, %s' % (v(vJ), v(vL)))
    A('v_lshrrev_b32 %s, 5, %s' % (v(vHH), v(vL)))
    A('s_lshl_b32 s24, s20, 9')
    A('s_add_u32 s24, s24, s21')
    A('v_lshlrev_b32 %s, 6, %s' % (v(vT), v(vHH)))
    A('v_add_u32 %s, s24, %s' % (v(vT), v(vT)))
    A('v_mul_u32_u24 %s, 896, %s' % (v(vT), v(vT)))
    A('v_lshlrev_b32 %s, 4, %s' % (v(vT2), v(vJ)))
    A('v_add_u32 %s, %s, %s' % (v(vOA), v(vT), v(vT2)))
    A('v_sub_u32 %s, %s, %s' % (v(vOB), v(vT), v(vT2)))
    A('v_add_u32 %s, %d, %s' % (v(vOB), 55 * 16, v(vOB)))
    A('v_cmp_gt_u32 vcc, 28, %s' % v(vJ))
    A('v_mov_b32 %s, 0x%x' % (v(vT), OOB))
    A('v_cndmask_b32 %s, %s, %s, vcc' % (v(vOA), v(vT), v(vOA)))
    A('v_cndmask_b32 %s, %s, %s, vcc' % (v(vOB), v(vT), v(vOB)))
    A('v_cndmask_b32 %s, 0, 1.0, vcc' % v(vMask))
    A('s_waitcnt lgkmcnt(0)')
    srd(A, 8, 4, 0, S_ * D_ * 2)
    srd(A, 12, 6, WS_A1, SZ_A1)
    vX = V.alloc(32, 4)
    tk = []
    for p in range(4):
        A('s_mov_b32 s25, %d' % (p * 2 * 64 * 896))
        A('buffer_load_dwordx4 %s, %s, s[8:11], s25 offen' % (v(vX + 8 * p, 4), v(vOA)))
        tk.append(A('buffer_load_dwordx4 %s, %s, s[8:11], s25 offen' % (v(vX + 8 * p + 4, 4), v(vOB))))
    Cf = V.alloc(28, 4); Sf = V.alloc(28, 4)
    Tc = V.alloc(8, 4); Ts = V.alloc(8, 4); Tn = V.alloc(8, 4)
    vI = V.alloc(); vG = V.alloc(); vGf = V.alloc(); vKf = V.alloc(); vK = V.alloc()
    A('v_and_b32 %s, 15, %s' % (v(vI), v(vL)))
    A('v_lshrrev_b32 %s, 4, %s' % (v(vG), v(vL)))
    A('v_cvt_f32_u32 %s, %s' % (v(vGf), v(vG)))
    A('s_lshl_b32 s26, s23, 4')
    A('v_add_u32 %s, s26, %s' % (v(vK), v(vI)))
    A('v_cvt_f32_u32 %s, %s' % (v(vKf), v(vK)))
    A('s_cmp_eq_u32 s23, 15')
    A('s_cbranch_scc1 K1_SKIPGEN')
    gen_rowdft_frags(A, V, vKf, vGf, True, Cf, Sf, False)
    m = V.mark()
    sf = V.alloc(8, 2); k1f = V.alloc(); t0 = V.alloc(2, 2); c0 = V.alloc(2, 2); s0 = V.alloc(2, 2)
    A('v_lshlrev_b32 %s, 8, %s' % (v(vT), v(vG)))
    A('v_add_u32 %s, s21, %s' % (v(vT), v(vT)))
    A('v_cvt_f32_u32 %s, %s' % (v(vT), v(vT)))
    for j in range(8):
        n1c = 16 * (j >> 2) + (j & 3)
        A('v_add_f32 %s, %s, %s' % (v(sf + j), f32(64.0 * n1c), v(vT)))
        A('v_mul_f32 %s, %s, %s' % (v(sf + j), f32(1.0 / 2048), v(sf + j)))
    for u in range(2):
        A('v_cvt_f32_u32 %s, %s' % (v(k1f), v(vI)))
        if u:
            A('v_add_f32 %s, %s, %s' % (v(k1f), f32(16.0), v(k1f)))
        for jp in range(4):
            for e in range(2):
                A('v_mul_f32 %s, %s, %s' % (v(t0 + e), v(k1f), v(sf + 2 * jp + e)))
            for e in range(2):
                A('v_fract_f32 %s, %s' % (v(t0 + e), v(t0 + e)))
            for e in range(2):
                A('v_cos_f32 %s, %s' % (v(c0 + e), v(t0 + e)))
            for e in range(2):
                A('v_sin_f32 %s, %s' % (v(s0 + e), v(t0 + e)))
            A('v_cvt_pk_bf16_f32 %s, %s, %s' % (v(Tc + 4 * u + jp), v(c0), v(c0 + 1)))
            A('v_cvt_pk_bf16_f32 %s, %s, %s' % (v(Ts + 4 * u + jp), v(s0), v(s0 + 1)))
            A('v_cvt_pk_bf16_f32 %s, -%s, -%s' % (v(Tn + 4 * u + jp), v(s0), v(s0 + 1)))
    V.release(m)
    A.label('K1_SKIPGEN')
    m = V.mark()
    U = V.alloc(64, 4)
    sm = [V.alloc() for _ in range(4)]; tm = [V.alloc() for _ in range(4)]
    mb = [V.alloc(2, 2) for _ in range(4)]; dl = [V.alloc() for _ in range(4)]
    sq = [V.alloc(2, 2) for _ in range(4)]
    vW = V.alloc()
    for p in range(4):
        A.wait_vm(tk[p])
        for i in range(8):
            A('v_lshlrev_b32 %s, 16, %s' % (v(U + 16 * p + 2 * i), v(vX + 8 * p + i)))
            A('v_and_b32 %s, 0xffff0000, %s' % (v(U + 16 * p + 2 * i + 1), v(vX + 8 * p + i)))
        A('v_pk_add_f32 %s, %s, %s' % (v(sq[p], 2), v(U + 16 * p, 2), v(U + 16 * p + 2, 2)))
        for i in range(2, 8):
            A('v_pk_add_f32 %s, %s, %s' % (v(sq[p], 2), v(sq[p], 2), v(U + 16 * p + 2 * i, 2)))
        A('v_add_f32 %s, %s, %s' % (v(sm[p]), v(sq[p]), v(sq[p] + 1)))
    allreduce32(A, sm, tm)
    for p in range(4):
        A('v_mul_f32 %s, %s, %s' % (v(sm[p]), f32(1.0 / 448), v(sm[p])))
    for p in range(4):
        round_bf16(A, mb[p], sm[p])
    for p in range(4):
        A('v_sub_f32 %s, %s, %s' % (v(dl[p]), v(sm[p]), v(mb[p])))
    for p in range(4):
        for i in range(8):
            A('v_pk_add_f32 %s, %s, %s op_sel_hi:[1,0] neg_lo:[0,1] neg_hi:[0,1]' % (
                v(U + 16 * p + 2 * i, 2), v(U + 16 * p + 2 * i, 2), v(mb[p], 2)))
        A('v_pk_mul_f32 %s, %s, %s' % (v(sq[p], 2), v(U + 16 * p, 2), v(U + 16 * p, 2)))
        for i in range(1, 8):
            A('v_pk_fma_f32 %s, %s, %s, %s' % (v(sq[p], 2), v(U + 16 * p + 2 * i, 2), v(U + 16 * p + 2 * i, 2), v(sq[p], 2)))
        A('v_add_f32 %s, %s, %s' % (v(sm[p]), v(sq[p]), v(sq[p] + 1)))
        A('v_mul_f32 %s, %s, %s' % (v(sm[p]), v(sm[p]), v(vMask)))
    allreduce32(A, sm, tm)
    for p in range(4):
        A('v_mul_f32 %s, %s, %s' % (v(sm[p]), f32(1.0 / 448), v(sm[p])))
        A('v_fma_f32 %s, -%s, %s, %s' % (v(sm[p]), v(dl[p]), v(dl[p]), v(sm[p])))
        A('v_max_f32 %s, 0, %s' % (v(sm[p]), v(sm[p])))
    for p in range(4):
        ln_scalars(A, None, sm[p], None)
    A('s_lshl_b32 s27, s20, 3')
    A('v_add_u32 %s, s27, %s' % (v(vW), v(vHH)))
    A('v_mul_u32_u24 %s, %d, %s' % (v(vW), LP, v(vW)))
    A('v_lshl_add_u32 %s, %s, 4, %s' % (v(vW), v(vJ), v(vW)))
    E = V.alloc(8, 4); O = V.alloc(8, 4); PE = V.alloc(4, 4); PO = V.alloc(4, 4)
    for p in range(4):
        a0 = U + 16 * p; b0 = a0 + 8
        A('v_mov_b32 %s, %s' % (v(mb[p]), v(sm[p])))
        for i in range(4):
            A('v_pk_add_f32 %s, %s, %s op_sel:[0,1] op_sel_hi:[1,0]' % (v(E + 2 * i, 2), v(a0 + 2 * i, 2), v(b0 + 6 - 2 * i, 2)))
            A('v_pk_add_f32 %s, %s, %s op_sel:[0,1] op_sel_hi:[1,0] neg_lo:[0,1] neg_hi:[0,1]' % (v(O + 2 * i, 2), v(a0 + 2 * i, 2), v(b0 + 6 - 2 * i, 2)))
        for i in range(4):
            A('v_pk_mul_f32 %s, %s, %s op_sel_hi:[1,0]' % (v(E + 2 * i, 2), v(E + 2 * i, 2), v(mb[p], 2)))
            A('v_pk_mul_f32 %s, %s, %s op_sel_hi:[1,0]' % (v(O + 2 * i, 2), v(O + 2 * i, 2), v(mb[p], 2)))
        for i in range(4):
            A('v_cvt_pk_bf16_f32 %s, %s, %s' % (v(PE + i), v(E + 2 * i), v(E + 2 * i + 1)))
            A('v_cvt_pk_bf16_f32 %s, %s, %s' % (v(PO + i), v(O + 2 * i), v(O + 2 * i + 1)))
        A('ds_write_b128 %s, %s offset:%d' % (v(vW), v(PE, 4), 2 * p * LP))
        A('ds_write_b128 %s, %s offset:%d' % (v(vW), v(PO, 4), 32 * LP + 2 * p * LP))
    V.release(m)
    A('s_waitcnt lgkmcnt(0)')
    A('s_barrier')
    A('s_cmp_eq_u32 s23, 15')
    A('s_cbranch_scc1 K1_END')
    vR = V.alloc()
    A('v_mul_u32_u24 %s, %d, %s' % (v(vR), LP, v(vI)))
    A('v_lshl_add_u32 %s, %s, 4, %s' % (v(vR), v(vG), v(vR)))
    Dre = V.alloc(8, 4); Dim = V.alloc(8, 4)
    AF = V.alloc(4 * 16, 4)
    rt = {}
    def rd(ks):
        for pl in range(2):
            for r in range(2):
                rt[(ks, pl, r)] = A('ds_read_b128 %s, %s offset:%d' % (
                    v(AF + 16 * (ks & 3) + 8 * pl + 4 * r, 4), v(vR), pl * 32 * LP + r * 16 * LP + 64 * ks))
    for ks in range(4):
        rd(ks)
    for ks in range(7):
        A.wait_lg(rt[(ks, 1, 1)])
        b = AF + 16 * (ks & 3)
        for r in range(2):
            c = '0' if ks == 0 else v(Dre + 4 * r, 4)
            A('v_mfma_f32_16x16x32_bf16 %s, %s, %s, %s' % (v(Dre + 4 * r, 4), v(b + 4 * r, 4), v(Cf + 4 * ks, 4), c))
        for r in range(2):
            c = '0' if ks == 0 else v(Dim + 4 * r, 4)
            A('v_mfma_f32_16x16x32_bf16 %s, %s, %s, %s' % (v(Dim + 4 * r, 4), v(b + 8 + 4 * r, 4), v(Sf + 4 * ks, 4), c))
        if ks + 4 < 7:
            rd(ks + 4)
    Xr = V.alloc(4, 4); Xi = V.alloc(4, 4)
    vSt = V.alloc()
    A('v_lshlrev_b32 %s, 18, %s' % (v(vSt), v(vG)))
    A('v_lshl_add_u32 %s, %s, 2, %s' % (v(vSt), v(vK), v(vSt)))
    A('s_lshl_b32 s28, s21, 10')
    A('v_add_u32 %s, s28, %s' % (v(vSt), v(vSt)))
    for i in range(4):
        A('v_cvt_pk_bf16_f32 %s, %s, %s' % (v(Xr + i), v(Dre + 2 * i), v(Dre + 2 * i + 1)))
    for i in range(4):
        A('v_cvt_pk_bf16_f32 %s, %s, %s' % (v(Xi + i), v(Dim + 2 * i), v(Dim + 2 * i + 1)))
    Ore = V.alloc(8, 4); Oim = V.alloc(8, 4)
    for u in range(2):
        A('v_mfma_f32_16x16x32_bf16 %s, %s, %s, 0' % (v(Ore + 4 * u, 4), v(Tc + 4 * u, 4), v(Xr, 4)))
        A('v_mfma_f32_16x16x32_bf16 %s, %s, %s, 0' % (v(Oim + 4 * u, 4), v(Tn + 4 * u, 4), v(Xr, 4)))
    for u in range(2):
        A('v_mfma_f32_16x16x32_bf16 %s, %s, %s, %s' % (v(Ore + 4 * u, 4), v(Ts + 4 * u, 4), v(Xi, 4), v(Ore + 4 * u, 4)))
        A('v_mfma_f32_16x16x32_bf16 %s, %s, %s, %s' % (v(Oim + 4 * u, 4), v(Tc + 4 * u, 4), v(Xi, 4), v(Oim + 4 * u, 4)))
    P = V.alloc(8, 4)
    for u in range(2):
        for r in range(4):
            A('v_cvt_pk_bf16_f32 %s, %s, %s' % (v(P + 4 * u + r), v(Ore + 4 * u + r), v(Oim + 4 * u + r)))
            A('s_mov_b32 s29, 0x%x' % ((16 * u + r) * 65536))
            A('buffer_store_dword %s, %s, s[12:15], s29 offen' % (v(P + 4 * u + r), v(vSt)))
    A.label_nopad('K1_END')
    A('s_endpgm')
    kernels.append(dict(name='k1_kernel', grid=256, block=256, lds=64 * LP, asm=A, nv=V.hi, na=0))


K2_MAIN = 128
K2_PGU = 196
K2_PD = 112
K2_CS = 14
def gen_k2():
    A = Asm(); V = Regs('v', 1, 256)
    tot = K2_MAIN + K2_PGU + K2_PD + K2_CS
    A('s_cmp_ge_u32 s2, %d' % tot)
    A('s_cbranch_scc1 K2_END')
    A('s_load_dwordx4 s[4:7], s[0:1], %d' % KA_WR)
    A('s_load_dwordx4 s[32:35], s[0:1], %d' % KA_WG)
    A('s_load_dwordx2 s[36:37], s[0:1], %d' % KA_WD)
    A('s_load_dwordx2 s[38:39], s[0:1], %d' % KA_WS)
    vL = V.alloc(); vT = V.alloc(); vT2 = V.alloc()
    A('v_and_b32 %s, 63, v0' % v(vL))
    A('v_lshrrev_b32 %s, 6, v0' % v(vT))
    A('v_readfirstlane_b32 s20, %s' % v(vT))
    A('s_cmp_ge_u32 s2, %d' % K2_MAIN)
    A('s_cbranch_scc1 K2_SIDE')
    base_mark = V.mark()
    A('s_and_b32 s21, s2, 31')
    A('s_lshr_b32 s22, s2, 5')
    A('s_lshl_b32 s23, s22, 2')
    A('s_add_u32 s23, s23, s20')
    A('s_cmp_eq_u32 s23, 15')
    A('s_cbranch_scc1 K2_END')
    vI = V.alloc(); vG = V.alloc(); vK = V.alloc(); vA = V.alloc(); vW = V.alloc(); vSt = V.alloc(); vKap = V.alloc()
    A('v_and_b32 %s, 15, %s' % (v(vI), v(vL)))
    A('v_lshrrev_b32 %s, 4, %s' % (v(vG), v(vL)))
    A('s_lshl_b32 s26, s23, 4')
    A('v_add_u32 %s, s26, %s' % (v(vK), v(vI)))
    A('s_lshl_b32 s27, s21, 16')
    A('v_lshlrev_b32 %s, 12, %s' % (v(vA), v(vG)))
    A('v_lshl_add_u32 %s, %s, 2, %s' % (v(vA), v(vK), v(vA)))
    A('v_add_u32 %s, s27, %s' % (v(vA), v(vA)))
    A('v_lshlrev_b32 %s, 7, %s' % (v(vW), v(vG)))
    A('v_add_u32 %s, s21, %s' % (v(vW), v(vW)))
    A('v_mul_u32_u24 %s, 450, %s' % (v(vW), v(vW)))
    A('v_lshl_add_u32 %s, %s, 1, %s' % (v(vW), v(vK), v(vW)))
    A('v_cmp_gt_u32 vcc, 225, %s' % v(vK))
    A('v_mov_b32 %s, 0x%x' % (v(vT), OOB))
    A('v_cndmask_b32 %s, %s, %s, vcc' % (v(vW), v(vT), v(vW)))
    kap = 1.0 / (2048 * 448)
    A('v_mov_b32 %s, %s' % (v(vKap), f32(2 * kap)))
    A('v_mov_b32 %s, %s' % (v(vT), f32(kap)))
    A('v_cmp_eq_u32 vcc, 0, %s' % v(vK))
    A('v_cndmask_b32 %s, %s, %s, vcc' % (v(vKap), v(vKap), v(vT)))
    A('v_cmp_eq_u32 vcc, 224, %s' % v(vK))
    A('v_cndmask_b32 %s, %s, %s, vcc' % (v(vKap), v(vKap), v(vT)))
    A('s_lshl_b32 s27, s21, 10')
    A('v_lshlrev_b32 %s, 17, %s' % (v(vSt), v(vG)))
    A('v_lshl_add_u32 %s, %s, 2, %s' % (v(vSt), v(vK), v(vSt)))
    A('v_add_u32 %s, s27, %s' % (v(vSt), v(vSt)))
    X = V.alloc(16, 4); WR = V.alloc(16, 4); WI = V.alloc(16, 4)
    for i in range(16):
        A('v_mov_b32 %s, 0' % v(WR + i)); A('v_mov_b32 %s, 0' % v(WI + i))
    A('s_waitcnt lgkmcnt(0)')
    srd(A, 8, 38, WS_A1, SZ_A1)
    srd(A, 12, 38, WS_Z2, SZ_Z2)
    srd(A, 16, 4, 0, 2048 * 450)
    srd(A, 40, 6, 0, 2048 * 450)
    for mm in range(4):
        A('s_mov_b32 s25, %d' % (mm * 16384))
        for jj in range(4):
            tx = A('buffer_load_dword %s, %s, s[8:11], s25 offen offset:%d' % (v(X + 4 * mm + jj), v(vA), jj * 1024))
    for rt in range(4):
        for r in range(4):
            A('s_mov_b32 s25, %d' % ((16 * rt + r) * 14400))
            A('buffer_load_short_d16_hi %s, %s, s[16:19], s25 offen' % (v(WR + 4 * rt + r), v(vW)))
            tw = A('buffer_load_short_d16_hi %s, %s, s[40:43], s25 offen' % (v(WI + 4 * rt + r), v(vW)))
    Fc = V.alloc(32, 4); Fs = V.alloc(32, 4)
    m = V.mark()
    bf = V.alloc(16, 2); af = V.alloc(); t0 = V.alloc(2, 2); c0 = V.alloc(2, 2); s0 = V.alloc(2, 2)
    A('v_cvt_f32_u32 %s, %s' % (v(vT), v(vG)))
    for mm in range(4):
        for jj in range(4):
            A('v_mov_b32 %s, %s' % (v(bf + 4 * mm + jj), f32((16 * mm + jj) / 64.0)))
            A('v_fmac_f32 %s, %s, %s' % (v(bf + 4 * mm + jj), f32(4 / 64.0), v(vT)))
    for rt in range(4):
        A('v_cvt_f32_u32 %s, %s' % (v(af), v(vI)))
        if rt:
            A('v_add_f32 %s, %s, %s' % (v(af), f32(16.0 * rt), v(af)))
        for ks in range(2):
            for jp in range(4):
                for e in range(2):
                    A('v_mul_f32 %s, %s, %s' % (v(t0 + e), v(af), v(bf + 8 * ks + 2 * jp + e)))
                for e in range(2):
                    A('v_fract_f32 %s, %s' % (v(t0 + e), v(t0 + e)))
                for e in range(2):
                    A('v_cos_f32 %s, %s' % (v(c0 + e), v(t0 + e)))
                for e in range(2):
                    A('v_sin_f32 %s, %s' % (v(s0 + e), v(t0 + e)))
                A('v_cvt_pk_bf16_f32 %s, %s, %s' % (v(Fc + 8 * rt + 4 * ks + jp), v(c0), v(c0 + 1)))
                A('v_cvt_pk_bf16_f32 %s, %s, %s' % (v(Fs + 8 * rt + 4 * ks + jp), v(s0), v(s0 + 1)))
    V.release(m)
    Xr = V.alloc(8, 4); Xi = V.alloc(8, 4); Xn = V.alloc(8, 4)
    A('s_mov_b32 s44, 0x05040100'); A('s_mov_b32 s45, 0x07060302')
    A.wait_vm(tx)
    for q in range(8):
        A('v_perm_b32 %s, %s, %s, s44' % (v(Xr + q), v(X + 2 * q + 1), v(X + 2 * q)))
        A('v_perm_b32 %s, %s, %s, s45' % (v(Xi + q), v(X + 2 * q + 1), v(X + 2 * q)))
    for q in range(8):
        A('v_xor_b32 %s, 0x80008000, %s' % (v(Xn + q), v(Xr + q)))
    Dr = V.alloc(16, 4); Di = V.alloc(16, 4)
    def cdft(Or, Oi, Br, Bi, BnR, BnI):
        for ks in range(2):
            for rt in range(4):
                A('v_mfma_f32_16x16x32_bf16 %s, %s, %s, %s' % (v(Or + 4 * rt, 4), v(Fc + 8 * rt + 4 * ks, 4), v(Br + 4 * ks, 4), '0' if ks == 0 else v(Or + 4 * rt, 4)))
                A('v_mfma_f32_16x16x32_bf16 %s, %s, %s, %s' % (v(Oi + 4 * rt, 4), v(Fc + 8 * rt + 4 * ks, 4), v(Bi + 4 * ks, 4), '0' if ks == 0 else v(Oi + 4 * rt, 4)))
            for rt in range(4):
                A('v_mfma_f32_16x16x32_bf16 %s, %s, %s, %s' % (v(Or + 4 * rt, 4), v(Fs + 8 * rt + 4 * ks, 4), v(BnR + 4 * ks, 4), v(Or + 4 * rt, 4)))
                A('v_mfma_f32_16x16x32_bf16 %s, %s, %s, %s' % (v(Oi + 4 * rt, 4), v(Fs + 8 * rt + 4 * ks, 4), v(BnI + 4 * ks, 4), v(Oi + 4 * rt, 4)))
    cdft(Dr, Di, Xr, Xi, Xi, Xn)
    A.wait_vm(tw)
    for i in range(16):
        A('v_mul_f32 %s, %s, %s' % (v(WR + i), v(WR + i), v(vKap)))
        A('v_mul_f32 %s, %s, %s' % (v(WI + i), v(WI + i), v(vKap)))
    Yr = V.alloc(16, 4); Yi = V.alloc(16, 4)
    for i in range(16):
        A('v_mul_f32 %s, %s, %s' % (v(Yr + i), v(Dr + i), v(WR + i)))
        A('v_mul_f32 %s, %s, %s' % (v(Yi + i), v(Dr + i), v(WI + i)))
        A('v_fma_f32 %s, -%s, %s, %s' % (v(Yr + i), v(Di + i), v(WI + i), v(Yr + i)))
        A('v_fma_f32 %s, %s, %s, %s' % (v(Yi + i), v(Di + i), v(WR + i), v(Yi + i)))
    for q in range(8):
        A('v_cvt_pk_bf16_f32 %s, %s, %s' % (v(Xr + q), v(Yr + 2 * q), v(Yr + 2 * q + 1)))
        A('v_cvt_pk_bf16_f32 %s, %s, %s' % (v(Xi + q), v(Yi + 2 * q), v(Yi + 2 * q + 1)))
        A('v_cvt_pk_bf16_f32 %s, -%s, -%s' % (v(Xn + q), v(Yi + 2 * q), v(Yi + 2 * q + 1)))
    cdft(Dr, Di, Xr, Xi, Xn, Xr)
    for rt in range(4):
        for r in range(4):
            A('v_cvt_pk_bf16_f32 %s, %s, %s' % (v(Yr + 4 * rt + r), v(Dr + 4 * rt + r), v(Di + 4 * rt + r)))
            A('s_mov_b32 s25, 0x%x' % ((16 * rt + r) * 32768))
            A('buffer_store_dword %s, %s, s[12:15], s25 offen' % (v(Yr + 4 * rt + r), v(vSt)))
    A('s_endpgm')
    A.label('K2_SIDE'); A.reset()
    V.release(base_mark)
    A('s_waitcnt lgkmcnt(0)')
    A('s_mov_b32 s44, 0x05040100'); A('s_mov_b32 s45, 0x07060302')
    A('s_cmp_ge_u32 s2, %d' % (K2_MAIN + K2_PGU))
    A('s_cbranch_scc1 K2_PACKD')
    A('s_sub_u32 s21, s2, %d' % K2_MAIN)
    A('s_lshl_b32 s21, s21, 2')
    A('s_add_u32 s21, s21, s20')
    A('s_cmp_ge_u32 s21, 392')
    A('s_cselect_b32 s22, 392, 0')
    A('s_cselect_b32 s46, s34, s32')
    A('s_cselect_b32 s47, s35, s33')
    A('s_cselect_b32 s48, 0x%x, 0' % (WS_WU - WS_WG))
    A('s_add_u32 s48, s48, 0x%x' % WS_WG)
    A('s_sub_u32 s21, s21, s22')
    A('s_mul_i32 s23, s21, 9363')
    A('s_lshr_b32 s23, s23, 16')
    A('s_mul_i32 s24, s23, 7')
    A('s_sub_u32 s24, s21, s24')
    srd(A, 8, 46, 0, SZ_W)
    A('s_add_u32 s12, s38, s48'); A('s_addc_u32 s13, s39, 0'); A('s_mov_b32 s14, 0x%x' % SZ_W); A('s_mov_b32 s15, 0x00020000')
    vS = V.alloc(); vD = V.alloc()
    A('s_mul_i32 s25, s23, %d' % (8 * 3584))
    A('s_lshl_b32 s26, s24, 9')
    A('s_add_u32 s25, s25, s26')
    A('v_lshlrev_b32 %s, 3, %s' % (v(vS), v(vL)))
    A('v_add_u32 %s, s25, %s' % (v(vS), v(vS)))
    A('v_lshrrev_b32 %s, 3, %s' % (v(vT), v(vL)))
    A('s_lshl_b32 s26, s24, 3')
    A('v_add_u32 %s, s26, %s' % (v(vT), v(vT)))
    A('v_mul_u32_u24 %s, %d, %s' % (v(vT), 28 * 1024, v(vT)))
    A('v_and_b32 %s, 7, %s' % (v(vT2), v(vL)))
    A('v_lshl_add_u32 %s, %s, 6, %s' % (v(vD), v(vT2), v(vT)))
    A('s_lshl_b32 s26, s23, 9')
    A('v_add_u32 %s, s26, %s' % (v(vD), v(vD)))
    L = V.alloc(16, 4); O = V.alloc(16, 4)
    def pack_body(rowoffs):
        for j in range(8):
            A('s_mov_b32 s25, %d' % rowoffs[j])
            tl = A('buffer_load_dwordx2 %s, %s, s[8:11], s25 offen' % (v(L + 2 * j, 2), v(vS)))
        A.wait_vm(tl)
        for n in range(4):
            for dw in range(4):
                lo = L + 2 * (2 * dw) + (n >> 1); hi = L + 2 * (2 * dw + 1) + (n >> 1)
                A('v_perm_b32 %s, %s, %s, %s' % (v(O + 4 * n + dw), v(hi), v(lo), 's45' if n & 1 else 's44'))
        for n in range(4):
            A('buffer_store_dwordx4 %s, %s, s[12:15], 0 offen offset:%d' % (v(O + 4 * n, 4), v(vD), 16 * n))
        A('s_endpgm')
    pack_body([j * 3584 for j in range(8)])
    A.label('K2_PACKD'); A.reset()
    A('s_cmp_ge_u32 s2, %d' % (K2_MAIN + K2_PGU + K2_PD))
    A('s_cbranch_scc1 K2_COLSUM')
    A('s_sub_u32 s21, s2, %d' % (K2_MAIN + K2_PGU))
    A('s_lshl_b32 s21, s21, 2')
    A('s_add_u32 s21, s21, s20')
    A('s_and_b32 s24, s21, 1')
    A('s_lshr_b32 s23, s21, 1')
    srd(A, 8, 36, 0, SZ_W)
    srd(A, 12, 38, WS_WD, SZ_W)
    A('s_lshr_b32 s25, s23, 1')
    A('s_and_b32 s26, s23, 1')
    A('s_lshl_b32 s25, s25, 4'); A('s_lshl_b32 s26, s26, 2'); A('s_add_u32 s25, s25, s26')
    A('s_mul_i32 s25, s25, 896')
    A('s_mul_i32 s26, s24, 448')
    A('s_add_u32 s25, s25, s26')
    A('v_lshlrev_b32 %s, 3, %s' % (v(vS), v(vL)))
    A('v_add_u32 %s, s25, %s' % (v(vS), v(vS)))
    A('v_lshrrev_b32 %s, 3, %s' % (v(vT), v(vL)))
    A('s_mul_i32 s26, s24, 7')
    A('v_add_u32 %s, s26, %s' % (v(vT), v(vT)))
    A('s_mov_b32 s26, %d' % (112 * 1024))
    A('v_mul_lo_u32 %s, %s, s26' % (v(vT), v(vT)))
    A('v_and_b32 %s, 7, %s' % (v(vT2), v(vL)))
    A('v_lshl_add_u32 %s, %s, 6, %s' % (v(vD), v(vT2), v(vT)))
    A('s_lshl_b32 s26, s23, 9')
    A('v_add_u32 %s, s26, %s' % (v(vD), v(vD)))
    A('v_cmp_gt_u32 vcc, 56, %s' % v(vL))
    A('v_mov_b32 %s, 0x%x' % (v(vT), OOB))
    A('v_cndmask_b32 %s, %s, %s, vcc' % (v(vS), v(vT), v(vS)))
    A('v_cndmask_b32 %s, %s, %s, vcc' % (v(vD), v(vT), v(vD)))
    pack_body([(8 * (j >> 2) + (j & 3)) * 896 for j in range(8)])
    A.label('K2_COLSUM'); A.reset()
    A('s_sub_u32 s21, s2, %d' % (K2_MAIN + K2_PGU + K2_PD))
    A('s_cmp_ge_u32 s21, 7')
    A('s_cselect_b32 s22, 7, 0')
    A('s_cselect_b32 s46, s34, s32')
    A('s_cselect_b32 s47, s35, s33')
    A('s_sub_u32 s24, s21, s22')
    srd(A, 8, 46, 0, SZ_W)
    srd(A, 12, 38, WS_CS, SZ_CS)
    A('s_mul_i32 s25, s20, %d' % (112 * 3584))
    A('s_lshl_b32 s26, s24, 9')
    A('s_add_u32 s25, s25, s26')
    A('v_lshlrev_b32 %s, 3, %s' % (v(vS), v(vL)))
    A('v_add_u32 %s, s25, %s' % (v(vS), v(vS)))
    m = V.mark()
    LL = V.alloc(112, 4); acc = V.alloc(4, 4); un = V.alloc(4, 4)
    for i in range(4):
        A('v_mov_b32 %s, 0' % v(acc + i))
    for half in range(2):
        tks = []
        for j in range(56):
            A('s_mov_b32 s25, %d' % ((56 * half + j) * 3584))
            tks.append(A('buffer_load_dwordx2 %s, %s, s[8:11], s25 offen' % (v(LL + 2 * j, 2), v(vS))))
        for j in range(56):
            if j % 8 == 0:
                A.wait_vm(tks[j + 7])
            A('v_lshlrev_b32 %s, 16, %s' % (v(un), v(LL + 2 * j)))
            A('v_and_b32 %s, 0xffff0000, %s' % (v(un + 1), v(LL + 2 * j)))
            A('v_lshlrev_b32 %s, 16, %s' % (v(un + 2), v(LL + 2 * j + 1)))
            A('v_and_b32 %s, 0xffff0000, %s' % (v(un + 3), v(LL + 2 * j + 1)))
            A('v_pk_add_f32 %s, %s, %s' % (v(acc, 2), v(acc, 2), v(un, 2)))
            A('v_pk_add_f32 %s, %s, %s' % (v(acc + 2, 2), v(acc + 2, 2), v(un + 2, 2)))
    A('v_lshlrev_b32 %s, 4, v0' % v(vT))
    A('ds_write_b128 %s, %s' % (v(vT), v(acc, 4)))
    A('s_waitcnt lgkmcnt(0)')
    A('s_barrier')
    A('s_cmp_lg_u32 s20, 0')
    A('s_cbranch_scc1 K2_END')
    for w in range(1, 4):
        A('ds_read_b128 %s, %s offset:%d' % (v(LL + 4 * w, 4), v(vT), 1024 * w))
    A('s_waitcnt lgkmcnt(0)')
    for w in range(1, 4):
        A('v_pk_add_f32 %s, %s, %s' % (v(acc, 2), v(acc, 2), v(LL + 4 * w, 2)))
        A('v_pk_add_f32 %s, %s, %s' % (v(acc + 2, 2), v(acc + 2, 2), v(LL + 4 * w + 2, 2)))
    A('s_lshl_b32 s25, s21, 10')
    A('buffer_store_dwordx4 %s, %s, s[12:15], s25 offen' % (v(acc, 4), v(vT)))
    A.label_nopad('K2_END')
    A('s_endpgm')
    kernels.append(dict(name='k2_kernel', grid=tot, block=256, lds=4096, asm=A, nv=V.hi, na=0))


def gen_k3():
    A = Asm(); V = Regs('v', 1, 256)
    A('s_cmp_ge_u32 s2, 256')
    A('s_cbranch_scc1 K3_END')
    A('s_load_dwordx2 s[4:5], s[0:1], %d' % KA_X)
    A('s_load_dwordx2 s[6:7], s[0:1], %d' % KA_WS)
    vL = V.alloc(); vT = V.alloc(); vT2 = V.alloc()
    A('v_and_b32 %s, 63, v0' % v(vL))
    A('v_lshrrev_b32 %s, 6, v0' % v(vT))
    A('v_readfirstlane_b32 s20, %s' % v(vT))
    A('s_and_b32 s21, s2, 63')
    A('s_lshr_b32 s22, s2, 6')
    A('s_lshl_b32 s23, s22, 2')
    A('s_add_u32 s23, s23, s20')
    A('s_mov_b32 %s, %s' % (s(SC16), f32(16.0)))
    A('s_mov_b32 %s, %s' % (s(SCM896), f32(-896.0)))
    vI = V.alloc(); vG = V.alloc(); vGf = V.alloc(); vZ = V.alloc(); vXa = V.alloc(); vXb = V.alloc()
    A('v_and_b32 %s, 15, %s' % (v(vI), v(vL)))
    A('v_lshrrev_b32 %s, 4, %s' % (v(vG), v(vL)))
    A('v_cvt_f32_u32 %s, %s' % (v(vGf), v(vG)))
    A('s_lshl_b32 s24, s21, 15')
    A('s_lshl_b32 s25, s20, 6')
    A('s_add_u32 s24, s24, s25')
    A('v_lshlrev_b32 %s, 12, %s' % (v(vZ), v(vG)))
    A('v_lshl_add_u32 %s, %s, 2, %s' % (v(vZ), v(vI), v(vZ)))
    A('v_add_u32 %s, s24, %s' % (v(vZ), v(vZ)))
    A('v_lshlrev_b32 %s, 6, %s' % (v(vT), v(vI)))
    A('v_add_u32 %s, s21, %s' % (v(vT), v(vT)))
    A('v_mul_u32_u24 %s, 896, %s' % (v(vT), v(vT)))
    A('s_lshl_b32 s24, s23, 5')
    A('v_lshlrev_b32 %s, 3, %s' % (v(vT2), v(vG)))
    A('v_add_u32 %s, s24, %s' % (v(vT2), v(vT2)))
    A('v_add_u32 %s, %s, %s' % (v(vXa), v(vT), v(vT2)))
    A('v_sub_u32 %s, %s, %s' % (v(vXb), v(vT), v(vT2)))
    A('v_add_u32 %s, 888, %s' % (v(vXb), v(vXb)))
    A('s_waitcnt lgkmcnt(0)')
    srd(A, 8, 4, 0, S_ * D_ * 2)
    srd(A, 12, 6, WS_Z2, SZ_Z2)
    srd(A, 16, 6, WS_H, SZ_H)
    ZL = V.alloc(32, 4)
    tz = []
    for q in range(4):
        for ks in range(2):
            A('s_mov_b32 s25, %d' % (ks * 16384 + 256 * q))
            if q == 3:
                A('s_cmp_eq_u32 s20, 3')
                A('s_cselect_b32 s25, 0x%x, s25' % OOB)
            for jj in range(4):
                tk = A('buffer_load_dword %s, %s, s[12:15], s25 offen offset:%d' % (v(ZL + 8 * q + 4 * ks + jj), v(vZ), jj * 1024))
        tz.append(tk)
    XL = V.alloc(8, 4)
    A('s_cmp_ge_u32 s23, 14')
    A('s_cselect_b32 s26, 0x%x, 0' % OOB)
    A('s_add_u32 s27, s26, %d' % (16 * 64 * 896))
    A('buffer_load_dwordx2 %s, %s, s[8:11], s26 offen' % (v(XL, 2), v(vXa)))
    A('buffer_load_dwordx2 %s, %s, s[8:11], s26 offen' % (v(XL + 2, 2), v(vXb)))
    A('buffer_load_dwordx2 %s, %s, s[8:11], s27 offen' % (v(XL + 4, 2), v(vXa)))
    txl = A('buffer_load_dwordx2 %s, %s, s[8:11], s27 offen' % (v(XL + 6, 2), v(vXb)))
    TB = V.alloc(32, 4)
    m = V.mark()
    sf = V.alloc(2, 2); k1f = V.alloc(8, 2); t0 = V.alloc(2, 2); c0 = V.alloc(2, 2); s0 = V.alloc(2, 2)
    A('v_lshlrev_b32 %s, 6, %s' % (v(vT), v(vI)))
    A('v_add_u32 %s, s21, %s' % (v(vT), v(vT)))
    A('v_cvt_f32_u32 %s, %s' % (v(sf), v(vT)))
    A('v_add_f32 %s, %s, %s' % (v(sf + 1), f32(1024.0), v(sf)))
    for ks in range(2):
        for jj in range(4):
            A('v_mov_b32 %s, %s' % (v(k1f + 4 * ks + jj), f32((16 * ks + jj) / 2048.0)))
            A('v_fmac_f32 %s, %s, %s' % (v(k1f + 4 * ks + jj), f32(4 / 2048.0), v(vGf)))
    for u in range(2):
        for ks in range(2):
            for jp in range(2):
                for e in range(2):
                    A('v_mul_f32 %s, %s, %s' % (v(t0 + e), v(sf + u), v(k1f + 4 * ks + 2 * jp + e)))
                for e in range(2):
                    A('v_fract_f32 %s, %s' % (v(t0 + e), v(t0 + e)))
                for e in range(2):
                    A('v_cos_f32 %s, %s' % (v(c0 + e), v(t0 + e)))
                for e in range(2):
                    A('v_sin_f32 %s, %s' % (v(s0 + e), v(t0 + e)))
                for e in range(2):
                    A('v_cvt_pk_bf16_f32 %s, %s, -%s' % (v(TB + 16 * u + 4 * ks + 2 * jp + e), v(c0 + e), v(s0 + e)))
                    A('v_cvt_pk_bf16_f32 %s, %s, %s' % (v(TB + 16 * u + 8 + 4 * ks + 2 * jp + e), v(s0 + e), v(c0 + e)))
    V.release(m)
    Cf = V.alloc(28, 4); Sf = V.alloc(28, 4)
    vDf = V.alloc()
    A('s_lshl_b32 s24, s23, 5')
    A('v_lshl_add_u32 %s, %s, 1, s24' % (v(vDf), v(vI)))
    A('v_add_u32 %s, 1, %s' % (v(vDf), v(vDf)))
    A('v_cvt_f32_u32 %s, %s' % (v(vDf), v(vDf)))
    A('s_cmp_ge_u32 s23, 14')
    A('s_cbranch_scc1 K3_SKIPGEN')
    gen_rowdft_frags(A, V, vDf, vGf, False, Cf, Sf, True)
    A.label('K3_SKIPGEN')
    vW = V.alloc()
    A('v_mul_u32_u24 %s, %d, %s' % (v(vW), LP, v(vI)))
    A('v_lshl_add_u32 %s, %s, 3, %s' % (v(vW), v(vG), v(vW)))
    A('s_lshl_b32 s24, s20, 5')
    A('v_add_u32 %s, s24, %s' % (v(vW), v(vW)))
    m = V.mark()
    DD = V.alloc(32, 4); PK = V.alloc(16, 4)
    for q in range(4):
        A.wait_vm(tz[q])
        Dq = DD + 16 * (q & 1)
        for ks in range(2):
            for u in range(2):
                for po in range(2):
                    d = Dq + 8 * u + 4 * po
                    A('v_mfma_f32_16x16x32_bf16 %s, %s, %s, %s' % (v(d, 4), v(ZL + 8 * q + 4 * ks, 4), v(TB + 16 * u + 8 * po + 4 * ks, 4), '0' if ks == 0 else v(d, 4)))
        if q >= 1:
            qq = q - 1
            Dp = DD + 16 * (qq & 1); Pp = PK + 8 * (qq & 1)
            for u in range(2):
                for po in range(2):
                    d = Dp + 8 * u + 4 * po; p = Pp + 4 * u + 2 * po
                    A('v_cvt_pk_bf16_f32 %s, %s, %s' % (v(p), v(d), v(d + 1)))
                    A('v_cvt_pk_bf16_f32 %s, %s, %s' % (v(p + 1), v(d + 2), v(d + 3)))
                    A('ds_write_b64 %s, %s offset:%d' % (v(vW), v(p, 2), po * 32 * LP + u * 16 * LP + 128 * qq))
    qq = 3
    Dp = DD + 16 * (qq & 1); Pp = PK + 8 * (qq & 1)
    for u in range(2):
        for po in range(2):
            d = Dp + 8 * u + 4 * po; p = Pp + 4 * u + 2 * po
            A('v_cvt_pk_bf16_f32 %s, %s, %s' % (v(p), v(d), v(d + 1)))
            A('v_cvt_pk_bf16_f32 %s, %s, %s' % (v(p + 1), v(d + 2), v(d + 3)))
            A('ds_write_b64 %s, %s offset:%d' % (v(vW), v(p, 2), po * 32 * LP + u * 16 * LP + 128 * qq))
    V.release(m)
    A('s_waitcnt lgkmcnt(0)')
    A('s_barrier')
    A('s_cmp_ge_u32 s23, 14')
    A('s_cbranch_scc1 K3_END')
    vR = V.alloc(); vN = V.alloc(2, 2)
    A('v_mul_u32_u24 %s, %d, %s' % (v(vR), LP, v(vI)))
    Pd = V.alloc(8, 4); Qd = V.alloc(8, 4)
    tn0 = A('ds_read_u16 %s, %s offset:%d' % (v(vN), v(vR), 32 * LP + 448))
    tn1 = A('ds_read_u16 %s, %s offset:%d' % (v(vN + 1), v(vR), 32 * LP + 16 * LP + 448))
    A('v_lshl_add_u32 %s, %s, 4, %s' % (v(vR), v(vG), v(vR)))
    BF = V.alloc(64, 4)
    rt = {}
    def rd(ks):
        for pl in range(2):
            for u in range(2):
                rt[(ks, pl, u)] = A('ds_read_b128 %s, %s offset:%d' % (
                    v(BF + 16 * (ks & 3) + 8 * pl + 4 * u, 4), v(vR), pl * 32 * LP + u * 16 * LP + 64 * ks))
    for ks in range(3):
        rd(ks)
    A.wait_lg(tn1)
    for u in range(2):
        A('v_lshlrev_b32 %s, 16, %s' % (v(Qd + 4 * u), v(vN + u)))
        A('v_xor_b32 %s, 0x80000000, %s' % (v(Qd + 4 * u + 1), v(Qd + 4 * u)))
        A('v_mov_b32 %s, %s' % (v(Qd + 4 * u + 2), v(Qd + 4 * u)))
        A('v_mov_b32 %s, %s' % (v(Qd + 4 * u + 3), v(Qd + 4 * u + 1)))
    rd(3)
    for ks in range(7):
        A.wait_lg(rt[(ks, 1, 1)])
        b = BF + 16 * (ks & 3)
        for u in range(2):
            A('v_mfma_f32_16x16x32_bf16 %s, %s, %s, %s' % (v(Pd + 4 * u, 4), v(Cf + 4 * ks, 4), v(b + 4 * u, 4), '0' if ks == 0 else v(Pd + 4 * u, 4)))
        for u in range(2):
            A('v_mfma_f32_16x16x32_bf16 %s, %s, %s, %s' % (v(Qd + 4 * u, 4), v(Sf + 4 * ks, 4), v(b + 8 + 4 * u, 4), v(Qd + 4 * u, 4)))
        if ks + 4 < 7:
            rd(ks + 4)
    A.wait_vm(txl)
    XU = ZL
    for u in range(2):
        for hf in range(2):
            for dw in range(2):
                src = XL + 4 * u + 2 * hf + dw
                A('v_lshlrev_b32 %s, 16, %s' % (v(XU + 8 * u + 4 * hf + 2 * dw), v(src)))
                A('v_and_b32 %s, 0xffff0000, %s' % (v(XU + 8 * u + 4 * hf + 2 * dw + 1), v(src)))
    Y = ZL + 16; HO = TB
    for u in range(2):
        for r in range(4):
            A('v_sub_f32 %s, %s, %s' % (v(Y + 8 * u + r), v(Pd + 4 * u + r), v(Qd + 4 * u + r)))
            A('v_add_f32 %s, %s, %s' % (v(Y + 8 * u + 4 + (3 - r)), v(Pd + 4 * u + r), v(Qd + 4 * u + r)))
    for i in range(8):
        A('v_cvt_pk_bf16_f32 %s, %s, %s' % (v(HO + i), v(Y + 2 * i), v(Y + 2 * i + 1)))
    for i in range(8):
        A('v_lshlrev_b32 %s, 16, %s' % (v(Y + 2 * i), v(HO + i)))
        A('v_and_b32 %s, 0xffff0000, %s' % (v(Y + 2 * i + 1), v(HO + i)))
    for i in range(8):
        A('v_pk_add_f32 %s, %s, %s' % (v(Y + 2 * i, 2), v(Y + 2 * i, 2), v(XU + 2 * i, 2)))
    for i in range(8):
        A('v_cvt_pk_bf16_f32 %s, %s, %s' % (v(HO + i), v(Y + 2 * i), v(Y + 2 * i + 1)))
    A('s_mov_b32 s27, %d' % (16 * 64 * 896))
    A('buffer_store_dwordx2 %s, %s, s[16:19], 0 offen' % (v(HO, 2), v(vXa)))
    A('buffer_store_dwordx2 %s, %s, s[16:19], 0 offen' % (v(HO + 2, 2), v(vXb)))
    A('buffer_store_dwordx2 %s, %s, s[16:19], s27 offen' % (v(HO + 4, 2), v(vXa)))
    A('buffer_store_dwordx2 %s, %s, s[16:19], s27 offen' % (v(HO + 6, 2), v(vXb)))
    A.label_nopad('K3_END')
    A('s_endpgm')
    kernels.append(dict(name='k3_kernel', grid=256, block=256, lds=64 * LP, asm=A, nv=V.hi, na=0))


def gen_k4():
    A = Asm(); V = Regs('v', 1, 256)
    A('s_cmp_ge_u32 s2, 224')
    A('s_cbranch_scc1 K4_END')
    A('s_load_dwordx2 s[6:7], s[0:1], %d' % KA_WS)
    vL = V.alloc(); vT = V.alloc(); vT2 = V.alloc()
    A('v_and_b32 %s, 63, v0' % v(vL))
    A('v_lshrrev_b32 %s, 6, v0' % v(vT))
    A('v_readfirstlane_b32 s20, %s' % v(vT))
    A('s_and_b32 s21, s2, 7')
    A('s_lshr_b32 s22, s2, 3')
    A('s_lshr_b32 s23, s21, 1'); A('s_lshl_b32 s23, s23, 2'); A('s_and_b32 s24, s22, 3'); A('s_add_u32 s23, s23, s24')
    A('s_and_b32 s24, s21, 1'); A('s_mul_i32 s24, s24, 7'); A('s_lshr_b32 s25, s22, 2'); A('s_add_u32 s24, s24, s25')
    A('s_lshl_b32 s25, s24, 2'); A('s_add_u32 s25, s25, s20')
    vDe = V.alloc(); vDo = V.alloc(); vWt = V.alloc(); vCs = V.alloc()
    A('v_lshrrev_b32 %s, 3, %s' % (v(vT), v(vL)))
    A('v_lshrrev_b32 %s, 1, %s' % (v(vT2), v(vT)))
    A('v_xor_b32 %s, %s, %s' % (v(vT2), v(vT2), v(vL)))
    A('v_and_b32 %s, 7, %s' % (v(vT2), v(vT2)))
    A('s_lshl_b32 s26, s23, 7'); A('s_lshl_b32 s27, s20, 5'); A('s_add_u32 s26, s26, s27')
    A('v_add_u32 %s, s26, %s' % (v(vT), v(vT)))
    A('v_mul_u32_u24 %s, 896, %s' % (v(vT), v(vT)))
    A('v_lshl_add_u32 %s, %s, 4, %s' % (v(vDe), v(vT2), v(vT)))
    A('v_xor_b32 %s, 4, %s' % (v(vT2), v(vT2)))
    A('v_lshl_add_u32 %s, %s, 4, %s' % (v(vDo), v(vT2), v(vT)))
    A('s_mul_i32 s26, s25, %d' % (28 * 1024))
    A('v_lshlrev_b32 %s, 4, %s' % (v(vWt), v(vL)))
    A('v_add_u32 %s, s26, %s' % (v(vWt), v(vWt)))
    vH = V.alloc(); vI = V.alloc()
    A('v_lshrrev_b32 %s, 5, %s' % (v(vH), v(vL)))
    A('v_and_b32 %s, 31, %s' % (v(vI), v(vL)))
    A('s_lshl_b32 s26, s25, 7')
    A('v_lshlrev_b32 %s, 4, %s' % (v(vCs), v(vH)))
    A('v_add_u32 %s, s26, %s' % (v(vCs), v(vCs)))
    vR = [V.alloc() for _ in range(4)]; vRS = [V.alloc() for _ in range(4)]
    A('v_lshrrev_b32 %s, 3, %s' % (v(vT), v(vI)))
    A('v_lshlrev_b32 %s, 10, %s' % (v(vT), v(vT)))
    A('v_and_b32 %s, 7, %s' % (v(vT2), v(vI)))
    A('v_lshl_add_u32 %s, %s, 7, %s' % (v(vT), v(vT2), v(vT)))
    A('v_bfe_u32 %s, %s, 1, 3' % (v(vT2), v(vI)))
    A('v_xor_b32 %s, %s, %s' % (v(vT2), v(vT2), v(vH)))
    A('s_lshl_b32 s26, s20, 12')
    for kq in range(4):
        A('v_xor_b32 %s, %d, %s' % (v(vR[kq]), 2 * kq, v(vT2)))
        A('v_lshl_add_u32 %s, %s, 4, %s' % (v(vR[kq]), v(vR[kq]), v(vT)))
        A('v_add_u32 %s, s26, %s' % (v(vRS[kq]), v(vR[kq])))
    A('s_waitcnt lgkmcnt(0)')
    srd(A, 8, 6, WS_H, SZ_H)
    srd(A, 12, 6, WS_WG, SZ_W)
    srd(A, 16, 6, WS_WU, SZ_W)
    srd(A, 28, 6, WS_CS, SZ_CS)
    srd(A, 32, 6, WS_HP, SZ_HP)
    CSG = V.alloc(16, 4); CSU = V.alloc(16, 4)
    A('s_lshl_b32 s36, s20, 12')
    tW = {}; tH = {}
    def issue(kb):
        for rgl in range(4):
            A('s_add_u32 m0, s36, %d' % (kb * 16384 + rgl * 1024))
            A('s_mov_b32 s37, %d' % (rgl * 8 * 896 + kb * 128))
            tH[kb] = A('buffer_load_dwordx4 %s, s[8:11], s37 offen lds' % v(vDo if rgl & 1 else vDe))
        for kq in range(4):
            ks = 4 * kb + kq
            A('s_mov_b32 s37, %d' % (ks * 1024))
            A('buffer_load_dwordx4 %s, %s, s[12:15], s37 offen' % (a(8 * ks, 4), v(vWt)))
            tW[ks] = A('buffer_load_dwordx4 %s, %s, s[16:19], s37 offen' % (a(8 * ks + 4, 4), v(vWt)))
    for kb in range(4):
        issue(kb)
    for q in range(4):
        A('buffer_load_dwordx4 %s, %s, s[28:31], 0 offen offset:%d' % (v(CSG + 4 * q, 4), v(vCs), 32 * q))
    A('s_mov_b32 s37, %d' % (F_ * 4))
    for q in range(4):
        tcs = A('buffer_load_dwordx4 %s, %s, s[28:31], s37 offen offset:%d' % (v(CSU + 4 * q, 4), v(vCs), 32 * q))
    AG = V.alloc(64, 4); AU = V.alloc(64, 4)
    BF = V.alloc(40, 4)
    sSum = V.alloc(); sSq = V.alloc(); vOne = V.alloc()
    A('v_mov_b32 %s, 0' % v(sSum)); A('v_mov_b32 %s, 0' % v(sSq)); A('v_mov_b32 %s, 0x3f803f80' % v(vOne))
    tB = {}
    def rdB(ks):
        kb, kq = ks >> 2, ks & 3
        off = (kb & 3) * 16384
        b = BF + 20 * (ks & 1)
        for ct in range(4):
            tB[(ks, ct)] = A('ds_read_b128 %s, %s offset:%d' % (v(b + 4 * ct, 4), v(vR[kq]), off + ct * 4096))
        tB[(ks, 4)] = A('ds_read_b128 %s, %s offset:%d' % (v(b + 16, 4), v(vRS[kq]), off))
    A.wait_vm(tH[0])
    A('s_barrier')
    rdB(0)
    for ks in range(28):
        kb, kq = ks >> 2, ks & 3
        if ks + 1 < 28:
            if kq == 3:
                A.wait_vm(tH[kb + 1])
                A('s_barrier')
                if kb + 1 == 4:
                    for r in vR + vRS:
                        A('v_add_u32 %s, 0x10000, %s' % (v(r), v(r)))
            rdB(ks + 1)
        A.wait_vm(tW[ks])
        A.wait_lg(tB[(ks, 4)])
        b = BF + 20 * (ks & 1)
        dots = []
        for i in range(4):
            dots.append('v_dot2_f32_bf16 %s, %s, %s, %s' % (v(sSum), v(b + 16 + i), v(vOne), v(sSum)))
            dots.append('v_dot2_f32_bf16 %s, %s, %s, %s' % (v(sSq), v(b + 16 + i), v(b + 16 + i), v(sSq)))
        for ct in range(4):
            A('v_mfma_f32_32x32x16_bf16 %s, %s, %s, %s' % (v(AG + 16 * ct, 16), a(8 * ks, 4), v(b + 4 * ct, 4), '0' if ks == 0 else v(AG + 16 * ct, 16)))
            A(dots[2 * ct])
            A('v_mfma_f32_32x32x16_bf16 %s, %s, %s, %s' % (v(AU + 16 * ct, 16), a(8 * ks + 4, 4), v(b + 4 * ct, 4), '0' if ks == 0 else v(AU + 16 * ct, 16)))
            A(dots[2 * ct + 1])
        if kq == 0 and kb + 4 < 7:
            issue(kb + 4)
    STAT = 7 * 16384
    A('v_mov_b32 %s, %s' % (v(vT), v(sSum))); A('v_mov_b32 %s, %s' % (v(vT2), v(sSq)))
    A('v_permlane32_swap_b32 %s, %s' % (v(sSum), v(vT)))
    A('v_permlane32_swap_b32 %s, %s' % (v(sSq), v(vT2)))
    A('v_add_f32 %s, %s, %s' % (v(sSum), v(sSum), v(vT)))
    A('v_add_f32 %s, %s, %s' % (v(sSq), v(sSq), v(vT2)))
    A('v_mul_f32 %s, %s, %s' % (v(sSum), f32(1.0 / 448), v(sSum)))
    A('v_mul_f32 %s, %s, %s' % (v(sSq), f32(1.0 / 448), v(sSq)))
    A('v_fma_f32 %s, -%s, %s, %s' % (v(sSq), v(sSum), v(sSum), v(sSq)))
    A('v_max_f32 %s, 0, %s' % (v(sSq), v(sSq)))
    ST = V.alloc(2, 2)
    round_bf16(A, ST, sSum)
    ln_scalars(A, None, sSq, None)
    A('v_mov_b32 %s, %s' % (v(ST + 1), v(sSq)))
    A('s_lshl_b32 s26, s20, 8')
    A('v_lshlrev_b32 %s, 3, %s' % (v(vT), v(vI)))
    A('v_add_u32 %s, s26, %s' % (v(vT2), v(vT)))
    A('v_add_u32 %s, 0x%x, %s' % (v(vT2), STAT, v(vT2)))
    A('v_add_u32 %s, 0x%x, %s' % (v(vT), STAT, v(vT)))
    A('ds_write_b64 %s, %s' % (v(vT2), v(ST, 2)))
    A('s_waitcnt lgkmcnt(0)')
    A('s_barrier')
    MS = BF
    for ct in range(4):
        A('ds_read_b64 %s, %s offset:%d' % (v(MS + 4 * ct, 2), v(vT), 256 * ct))
    vSt = vWt
    A('s_mul_i32 s26, s23, %d' % (4 * 114688))
    A('s_lshl_b32 s27, s25, 11')
    A('s_add_u32 s26, s26, s27')
    A('v_lshlrev_b32 %s, 4, %s' % (v(vSt), v(vL)))
    A('v_add_u32 %s, s26, %s' % (v(vSt), v(vSt)))
    A('s_waitcnt lgkmcnt(0)')
    LOG2E = 1.4426950408889634
    for ct in range(4):
        A('v_mul_f32 %s, %s, %s' % (v(MS + 4 * ct + 2), f32(-LOG2E), v(MS + 4 * ct + 1)))
    A.wait_vm(tcs)
    PK = BF + 16
    for ct in range(4):
        mreg = MS + 4 * ct
        g0 = AG + 16 * ct; u0 = AU + 16 * ct
        for i in range(8):
            A('v_pk_fma_f32 %s, %s, %s, %s op_sel_hi:[1,0,1] neg_lo:[0,1,0] neg_hi:[0,1,0]' % (v(g0 + 2 * i, 2), v(CSG + 2 * i, 2), v(mreg, 2), v(g0 + 2 * i, 2)))
            A('v_pk_fma_f32 %s, %s, %s, %s op_sel_hi:[1,0,1] neg_lo:[0,1,0] neg_hi:[0,1,0]' % (v(u0 + 2 * i, 2), v(CSU + 2 * i, 2), v(mreg, 2), v(u0 + 2 * i, 2)))
        for i in range(8):
            A('v_pk_mul_f32 %s, %s, %s op_sel_hi:[1,0]' % (v(g0 + 2 * i, 2), v(g0 + 2 * i, 2), v(mreg + 2, 2)))
            A('v_pk_mul_f32 %s, %s, %s op_sel:[0,1] op_sel_hi:[1,1]' % (v(u0 + 2 * i, 2), v(u0 + 2 * i, 2), v(mreg, 2)))
        for i in range(16):
            A('v_exp_f32 %s, %s' % (v(g0 + i), v(g0 + i)))
        for i in range(8):
            A('v_pk_add_f32 %s, %s, 1.0 op_sel_hi:[1,0]' % (v(g0 + 2 * i, 2), v(g0 + 2 * i, 2)))
        for i in range(16):
            A('v_rcp_f32 %s, %s' % (v(g0 + i), v(g0 + i)))
        for i in range(8):
            A('v_pk_mul_f32 %s, %s, %s' % (v(u0 + 2 * i, 2), v(u0 + 2 * i, 2), v(g0 + 2 * i, 2)))
        p = PK + 8 * (ct & 1)
        for i in range(8):
            A('v_cvt_pk_bf16_f32 %s, %s, %s' % (v(p + i), v(u0 + 2 * i), v(u0 + 2 * i + 1)))
        A('s_mov_b32 s37, %d' % (ct * 114688))
        A('buffer_store_dwordx4 %s, %s, s[32:35], s37 offen' % (v(p, 4), v(vSt)))
        A('buffer_store_dwordx4 %s, %s, s[32:35], s37 offen offset:1024' % (v(p + 4, 4), v(vSt)))
    A.label_nopad('K4_END')
    A('s_endpgm')
    kernels.append(dict(name='k4_kernel', grid=224, block=256, lds=7 * 16384 + 1024, asm=A, nv=256, na=224))

def gen_k5():
    A = Asm(); V = Regs('v', 1, 256)
    A('s_cmp_ge_u32 s2, 224')
    A('s_cbranch_scc1 K5_END')
    A('s_load_dwordx2 s[4:5], s[0:1], %d' % KA_OUT)
    A('s_load_dwordx2 s[6:7], s[0:1], %d' % KA_WS)
    vL = V.alloc(); vT = V.alloc(); vT2 = V.alloc()
    A('v_and_b32 %s, 63, v0' % v(vL))
    A('v_lshrrev_b32 %s, 6, v0' % v(vT))
    A('v_readfirstlane_b32 s20, %s' % v(vT))
    A('s_and_b32 s21, s2, 7')
    A('s_lshr_b32 s22, s2, 3')
    A('s_lshl_b32 s23, s21, 2'); A('s_and_b32 s24, s22, 3'); A('s_add_u32 s23, s23, s24')
    A('s_lshr_b32 s24, s22, 2')
    vA = V.alloc(); vB = V.alloc(); vO = V.alloc()
    A('s_mul_i32 s25, s20, %d' % (28 * 1024))
    A('s_mul_i32 s26, s24, %d' % (2 * 114688)); A('s_add_u32 s26, s26, s25')
    A('s_mul_i32 s27, s23, %d' % (2 * 114688)); A('s_add_u32 s27, s27, s25')
    A('v_lshlrev_b32 %s, 4, %s' % (v(vT), v(vL)))
    A('v_add_u32 %s, s26, %s' % (v(vA), v(vT)))
    A('v_add_u32 %s, s27, %s' % (v(vB), v(vT)))
    A('s_and_b32 s25, s20, 1'); A('s_lshl_b32 s25, s25, 5'); A('s_lshl_b32 s26, s23, 6'); A('s_add_u32 s25, s25, s26')
    A('v_and_b32 %s, 31, %s' % (v(vT), v(vL)))
    A('v_add_u32 %s, s25, %s' % (v(vT), v(vT)))
    A('v_mul_u32_u24 %s, 896, %s' % (v(vT), v(vT)))
    A('s_lshr_b32 s25, s20, 1'); A('s_lshl_b32 s25, s25, 6'); A('s_lshl_b32 s26, s24, 7'); A('s_add_u32 s25, s25, s26')
    A('v_lshrrev_b32 %s, 5, %s' % (v(vT2), v(vL)))
    A('v_lshl_add_u32 %s, %s, 3, %s' % (v(vO), v(vT2), v(vT)))
    A('v_add_u32 %s, s25, %s' % (v(vO), v(vO)))
    A('s_waitcnt lgkmcnt(0)')
    srd(A, 8, 6, WS_WD, SZ_W)
    srd(A, 12, 6, WS_HP, SZ_HP)
    srd(A, 16, 6, WS_H, SZ_H)
    srd(A, 28, 4, 0, S_ * D_ * 2)
    HR = V.alloc(8, 4)
    RING = 14
    tk = {}
    def issue(ks):
        r = 16 * (ks % RING)
        A('s_mov_b32 s36, %d' % (ks * 1024)); A('s_mov_b32 s37, %d' % (ks * 1024 + 114688))
        A('buffer_load_dwordx4 %s, %s, s[8:11], s36 offen' % (a(r, 4), v(vA)))
        A('buffer_load_dwordx4 %s, %s, s[12:15], s36 offen' % (a(r + 8, 4), v(vB)))
        A('buffer_load_dwordx4 %s, %s, s[8:11], s37 offen' % (a(r + 4, 4), v(vA)))
        tk[ks] = A('buffer_load_dwordx4 %s, %s, s[12:15], s37 offen' % (a(r + 12, 4), v(vB)))
    for ks in range(RING):
        issue(ks)
    for q in range(4):
        thr = A('buffer_load_dwordx2 %s, %s, s[16:19], 0 offen offset:%d' % (v(HR + 2 * q, 2), v(vO), 16 * q))
    AC = V.alloc(64, 4)
    for ks in range(28):
        A.wait_vm(tk[ks])
        r = 16 * (ks % RING)
        for aa in range(2):
            for bb in range(2):
                d = AC + 16 * (2 * aa + bb)
                A('v_mfma_f32_32x32x16_bf16 %s, %s, %s, %s' % (v(d, 16), a(r + 4 * aa, 4), a(r + 8 + 4 * bb, 4), '0' if ks == 0 else v(d, 16)))
        if ks + RING < 28:
            issue(ks + RING)
    vW = V.alloc(); vRd = V.alloc()
    A('s_lshl_b32 s25, s20, 14')
    A('v_lshlrev_b32 %s, 4, %s' % (v(vT), v(vL)))
    A('v_add_u32 %s, s25, %s' % (v(vW), v(vT)))
    A('s_lshl_b32 s25, s20, 12')
    A('v_add_u32 %s, s25, %s' % (v(vRd), v(vT)))
    for tl in range(4):
        for q in range(4):
            A('ds_write_b128 %s, %s offset:%d' % (v(vW), v(AC + 16 * tl + 4 * q, 4), tl * 4096 + q * 1024))
    A('s_waitcnt lgkmcnt(0)')
    A('s_barrier')
    RD = V.alloc(64, 4)
    tr = {}
    for q in range(4):
        for w in range(4):
            tr[(q, w)] = A('ds_read_b128 %s, %s offset:%d' % (v(RD + 16 * q + 4 * w, 4), v(vRd), w * 16384 + q * 1024))
    A.wait_vm(thr)
    HU = V.alloc(16, 4); PO = V.alloc(8, 4)
    for i in range(8):
        A('v_lshlrev_b32 %s, 16, %s' % (v(HU + 2 * i), v(HR + i)))
        A('v_and_b32 %s, 0xffff0000, %s' % (v(HU + 2 * i + 1), v(HR + i)))
    for q in range(4):
        A.wait_lg(tr[(q, 3)])
        b = RD + 16 * q
        for hf in range(2):
            A('v_pk_add_f32 %s, %s, %s' % (v(b + 2 * hf, 2), v(b + 2 * hf, 2), v(b + 4 + 2 * hf, 2)))
            A('v_pk_add_f32 %s, %s, %s' % (v(b + 8 + 2 * hf, 2), v(b + 8 + 2 * hf, 2), v(b + 12 + 2 * hf, 2)))
        for hf in range(2):
            A('v_pk_add_f32 %s, %s, %s' % (v(b + 2 * hf, 2), v(b + 2 * hf, 2), v(b + 8 + 2 * hf, 2)))
        for hf in range(2):
            A('v_cvt_pk_bf16_f32 %s, %s, %s' % (v(PO + 2 * q + hf), v(b + 2 * hf), v(b + 2 * hf + 1)))
        for hf in range(2):
            A('v_lshlrev_b32 %s, 16, %s' % (v(b + 2 * hf), v(PO + 2 * q + hf)))
            A('v_and_b32 %s, 0xffff0000, %s' % (v(b + 2 * hf + 1), v(PO + 2 * q + hf)))
        for hf in range(2):
            A('v_pk_add_f32 %s, %s, %s' % (v(b + 2 * hf, 2), v(b + 2 * hf, 2), v(HU + 4 * q + 2 * hf, 2)))
        for hf in range(2):
            A('v_cvt_pk_bf16_f32 %s, %s, %s' % (v(PO + 2 * q + hf), v(b + 2 * hf), v(b + 2 * hf + 1)))
        A('buffer_store_dwordx2 %s, %s, s[28:31], 0 offen offset:%d' % (v(PO + 2 * q, 2), v(vO), 16 * q))
    A.label_nopad('K5_END')
    A('s_endpgm')
    kernels.append(dict(name='k5_kernel', grid=224, block=256, lds=65536, asm=A, nv=256, na=224))

def finish():
    out = []
    hdr = open('cdna_kernels/%s.s.ref' % NAME).read().split('\n')
    for l in hdr:
        if l.startswith(';') and '@launch' not in l and 'Override launch' not in l and 'grid=ceil' not in l:
            out.append(l)
        elif not l.startswith(';'):
            break
    for k in kernels:
        out.append('; @launch kernel=%s grid=(%d,1,1) block=(%d,1,1) lds=%d' % (k['name'], k['grid'], k['block'], k['lds']))
    out.append('.amdgcn_target "amdgcn-amd-amdhsa--gfx950"')
    out.append('.text')
    for k in kernels:
        out.append('.globl %s' % k['name'])
        out.append('.p2align 8')
        out.append('.type %s,@function' % k['name'])
        out.append('%s:' % k['name'])
        out.append(k['asm'].text())
    out.append('.section .rodata,"a"')
    for k in kernels:
        nv = k['nv']; na = k['na']
        acc = (nv + 3) // 4 * 4
        tot = acc + na if na else nv
        out.append('.p2align 6')
        out.append('.amdhsa_kernel %s' % k['name'])
        out.append('  .amdhsa_next_free_vgpr %d' % tot)
        out.append('  .amdhsa_next_free_sgpr 96')
        out.append('  .amdhsa_accum_offset %d' % acc)
        out.append('  .amdhsa_group_segment_fixed_size 0')
        out.append('  .amdhsa_kernarg_size 80')
        out.append('  .amdhsa_user_sgpr_count 2')
        out.append('  .amdhsa_user_sgpr_kernarg_segment_ptr 1')
        out.append('  .amdhsa_system_sgpr_workgroup_id_x 1')
        out.append('.end_amdhsa_kernel')
    return '\n'.join(out) + '\n'

if __name__ == '__main__':
    gen_k1()
    gen_k2()
    gen_k3()
    gen_k4()
    gen_k5()
    txt = finish()
    path = sys.argv[1] if len(sys.argv) > 1 else 'cdna_kernels/%s.s' % NAME
    open(path, 'w').write(txt)
    for k in kernels:
        print(k['name'], 'insts', k['asm'].ninst, 'nops', k['asm'].nops, 'vgpr', k['nv'], 'agpr', k['na'])
```

```python
import sys, math
from asmdsl import *

NAME = 'sequential_preLN__spectral_gfnet__glu_gated_glu__prompt'
S_, D_, F_ = 2048, 448, 1792
WS_A1 = 0x000000; SZ_A1 = 0x200000
WS_Z2 = 0x200000; SZ_Z2 = 0x200000
WS_H  = 0x400000; SZ_H = S_ * D_ * 2
WS_WG = 0x600000; SZ_W = D_ * F_ * 2
WS_WU = 0x800000
WS_WD = 0xA00000
WS_CS = 0xC00000; SZ_CS = 2 * F_ * 4
WS_HP = 0xD00000; SZ_HP = S_ * F_ * 2
OOB = 0x40000000
KA_X, KA_WR, KA_WI, KA_BX, KA_WG, KA_WU, KA_WD, KA_OUT, KA_DBG, KA_WS = [8 * i for i in range(10)]

kernels = []

def srd(A, d, base, off, size):
    if off:
        A('s_add_u32 %s, %s, 0x%x' % (s(d), s(base), off))
        A('s_addc_u32 %s, %s, 0' % (s(d + 1), s(base + 1)))
    else:
        A('s_mov_b32 %s, %s' % (s(d), s(base)))
        A('s_mov_b32 %s, %s' % (s(d + 1), s(base + 1)))
    A('s_mov_b32 %s, 0x%x' % (s(d + 2), size))
    A('s_mov_b32 %s, 0x00020000' % s(d + 3))

def round_bf16(A, dst, src):
    A('v_cvt_pk_bf16_f32 %s, %s, %s' % (v(dst), v(src), v(src)))
    A('v_lshlrev_b32 %s, 16, %s' % (v(dst), v(dst)))

def allreduce16(A, regs, tmp=None):
    for mod in ('quad_perm:[1,0,3,2]', 'quad_perm:[2,3,0,1]', 'row_half_mirror', 'row_mirror'):
        for r in regs:
            A('v_add_f32_dpp %s, %s, %s %s row_mask:0xf bank_mask:0xf' % (v(r), v(r), v(r), mod))

def allreduce32(A, regs, tmps):
    allreduce16(A, regs)
    for r, t in zip(regs, tmps):
        A('v_mov_b32 %s, %s' % (v(t), v(r)))
    for r, t in zip(regs, tmps):
        A('v_permlane16_swap_b32 %s, %s' % (v(r), v(t)))
    for r, t in zip(regs, tmps):
        A('v_add_f32 %s, %s, %s' % (v(r), v(r), v(t)))

def ln_scalars(A, vsum_mean, vvar, tmp):
    round_bf16(A, vvar, vvar)
    A('v_add_f32 %s, %s, %s' % (v(vvar), f32(1e-5), v(vvar)))
    round_bf16(A, vvar, vvar)
    A('v_sqrt_f32 %s, %s' % (v(vvar), v(vvar)))
    round_bf16(A, vvar, vvar)
    A('v_rcp_f32 %s, %s' % (v(vvar), v(vvar)))

def gen_rowdft_frags(A, V, vIdxF, vG, negsin, Cf, Sf, swap_roles):
    m = V.mark()
    off = V.alloc(8, 2); base = V.alloc(1); q = V.alloc(1); t0 = V.alloc(2, 2); c0 = V.alloc(2, 2); s0 = V.alloc(2, 2)
    slot0 = V.alloc(1)
    inv = 1.0 / 896.0
    for j in range(8):
        mult = (2 * j if not swap_roles else j) * inv
        A('v_mul_f32 %s, %s, %s' % (v(off + j), f32(mult), v(vIdxF)))
    if not swap_roles:
        A('v_fma_f32 %s, %s, %s, 1.0' % (v(slot0), v(vG), 's[SIXTEEN]'.replace('s[SIXTEEN]', s(SC16))))
    else:
        A('v_mul_f32 %s, %s, %s' % (v(slot0), f32(8.0), v(vG)))
    for ks in range(7):
        add = 64.0 * ks if not swap_roles else 32.0 * ks
        A('v_add_f32 %s, %s, %s' % (v(base), f32(add), v(slot0)))
        A('v_mul_f32 %s, %s, %s' % (v(base), v(base), v(vIdxF)))
        A('v_mul_f32 %s, %s, %s' % (v(q), f32(inv), v(base)))
        A('v_floor_f32 %s, %s' % (v(q), v(q)))
        A('v_fma_f32 %s, %s, %s, %s' % (v(base), v(q), s(SCM896), v(base)))
        A('v_mul_f32 %s, %s, %s' % (v(base), f32(inv), v(base)))
        for jp in range(4):
            A('v_add_f32 %s, %s, %s' % (v(t0), v(base), v(off + 2 * jp)))
            A('v_add_f32 %s, %s, %s' % (v(t0 + 1), v(base), v(off + 2 * jp + 1)))
            A('v_cos_f32 %s, %s' % (v(c0), v(t0)))
            A('v_cos_f32 %s, %s' % (v(c0 + 1), v(t0 + 1)))
            A('v_sin_f32 %s, %s' % (v(s0), v(t0)))
            A('v_sin_f32 %s, %s' % (v(s0 + 1), v(t0 + 1)))
            A('v_cvt_pk_bf16_f32 %s, %s, %s' % (v(Cf + 4 * ks + jp), v(c0), v(c0 + 1)))
            ng = '-' if negsin else ''
            A('v_cvt_pk_bf16_f32 %s, %s%s, %s%s' % (v(Sf + 4 * ks + jp), ng, v(s0), ng, v(s0 + 1)))
    V.release(m)

SC16 = 90; SCM896 = 91
LP = 544

def gen_k1():
    A = Asm(); V = Regs('v', 1, 256)
    A('s_cmp_ge_u32 s2, 256')
    A('s_cbranch_scc1 K1_END')
    A('s_load_dwordx2 s[4:5], s[0:1], %d' % KA_X)
    A('s_load_dwordx2 s[6:7], s[0:1], %d' % KA_WS)
    vL = V.alloc(); vT = V.alloc(); vT2 = V.alloc()
    A('v_and_b32 %s, 63, v0' % v(vL))
    A('v_lshrrev_b32 %s, 6, v0' % v(vT))
    A('v_readfirstlane_b32 s20, %s' % v(vT))
    A('s_and_b32 s21, s2, 63')
    A('s_lshr_b32 s22, s2, 6')
    A('s_lshl_b32 s23, s22, 2')
    A('s_add_u32 s23, s23, s20')
    A('s_mov_b32 %s, %s' % (s(SC16), f32(16.0)))
    A('s_mov_b32 %s, %s' % (s(SCM896), f32(-896.0)))
    vJ = V.alloc(); vHH = V.alloc(); vOA = V.alloc(); vOB = V.alloc(); vMask = V.alloc()
    A('v_and_b32 %s, 31, %s' % (v(vJ), v(vL)))
    A('v_lshrrev_b32 %s, 5, %s' % (v(vHH), v(vL)))
    A('s_lshl_b32 s24, s20, 9')
    A('s_add_u32 s24, s24, s21')
    A('v_lshlrev_b32 %s, 6, %s' % (v(vT), v(vHH)))
    A('v_add_u32 %s, s24, %s' % (v(vT), v(vT)))
    A('v_mul_u32_u24 %s, 896, %s' % (v(vT), v(vT)))
    A('v_lshlrev_b32 %s, 4, %s' % (v(vT2), v(vJ)))
    A('v_add_u32 %s, %s, %s' % (v(vOA), v(vT), v(vT2)))
    A('v_sub_u32 %s, %s, %s' % (v(vOB), v(vT), v(vT2)))
    A('v_add_u32 %s, %d, %s' % (v(vOB), 55 * 16, v(vOB)))
    A('v_cmp_gt_u32 vcc, 28, %s' % v(vJ))
    A('v_mov_b32 %s, 0x%x' % (v(vT), OOB))
    A('v_cndmask_b32 %s, %s, %s, vcc' % (v(vOA), v(vT), v(vOA)))
    A('v_cndmask_b32 %s, %s, %s, vcc' % (v(vOB), v(vT), v(vOB)))
    A('v_cndmask_b32 %s, 0, 1.0, vcc' % v(vMask))
    A('s_waitcnt lgkmcnt(0)')
    srd(A, 8, 4, 0, S_ * D_ * 2)
    srd(A, 12, 6, WS_A1, SZ_A1)
    vX = V.alloc(32, 4)
    tk = []
    for p in range(4):
        A('s_mov_b32 s25, %d' % (p * 2 * 64 * 896))
        A('buffer_load_dwordx4 %s, %s, s[8:11], s25 offen' % (v(vX + 8 * p, 4), v(vOA)))
        tk.append(A('buffer_load_dwordx4 %s, %s, s[8:11], s25 offen' % (v(vX + 8 * p + 4, 4), v(vOB))))
    Cf = V.alloc(28, 4); Sf = V.alloc(28, 4)
    Tc = V.alloc(8, 4); Ts = V.alloc(8, 4); Tn = V.alloc(8, 4)
    vI = V.alloc(); vG = V.alloc(); vGf = V.alloc(); vKf = V.alloc(); vK = V.alloc()
    A('v_and_b32 %s, 15, %s' % (v(vI), v(vL)))
    A('v_lshrrev_b32 %s, 4, %s' % (v(vG), v(vL)))
    A('v_cvt_f32_u32 %s, %s' % (v(vGf), v(vG)))
    A('s_lshl_b32 s26, s23, 4')
    A('v_add_u32 %s, s26, %s' % (v(vK), v(vI)))
    A('v_cvt_f32_u32 %s, %s' % (v(vKf), v(vK)))
    A('s_cmp_eq_u32 s23, 15')
    A('s_cbranch_scc1 K1_SKIPGEN')
    gen_rowdft_frags(A, V, vKf, vGf, True, Cf, Sf, False)
    m = V.mark()
    sf = V.alloc(8, 2); k1f = V.alloc(); t0 = V.alloc(2, 2); c0 = V.alloc(2, 2); s0 = V.alloc(2, 2)
    A('v_lshlrev_b32 %s, 8, %s' % (v(vT), v(vG)))
    A('v_add_u32 %s, s21, %s' % (v(vT), v(vT)))
    A('v_cvt_f32_u32 %s, %s' % (v(vT), v(vT)))
    for j in range(8):
        n1c = 16 * (j >> 2) + (j & 3)
        A('v_add_f32 %s, %s, %s' % (v(sf + j), f32(64.0 * n1c), v(vT)))
        A('v_mul_f32 %s, %s, %s' % (v(sf + j), f32(1.0 / 2048), v(sf + j)))
    for u in range(2):
        A('v_cvt_f32_u32 %s, %s' % (v(k1f), v(vI)))
        if u:
            A('v_add_f32 %s, %s, %s' % (v(k1f), f32(16.0), v(k1f)))
        for jp in range(4):
            for e in range(2):
                A('v_mul_f32 %s, %s, %s' % (v(t0 + e), v(k1f), v(sf + 2 * jp + e)))
            for e in range(2):
                A('v_fract_f32 %s, %s' % (v(t0 + e), v(t0 + e)))
            for e in range(2):
                A('v_cos_f32 %s, %s' % (v(c0 + e), v(t0 + e)))
            for e in range(2):
                A('v_sin_f32 %s, %s' % (v(s0 + e), v(t0 + e)))
            A('v_cvt_pk_bf16_f32 %s, %s, %s' % (v(Tc + 4 * u + jp), v(c0), v(c0 + 1)))
            A('v_cvt_pk_bf16_f32 %s, %s, %s' % (v(Ts + 4 * u + jp), v(s0), v(s0 + 1)))
            A('v_cvt_pk_bf16_f32 %s, -%s, -%s' % (v(Tn + 4 * u + jp), v(s0), v(s0 + 1)))
    V.release(m)
    A.label('K1_SKIPGEN')
    m = V.mark()
    U = V.alloc(64, 4)
    sm = [V.alloc() for _ in range(4)]; tm = [V.alloc() for _ in range(4)]
    mb = [V.alloc(2, 2) for _ in range(4)]; dl = [V.alloc() for _ in range(4)]
    sq = [V.alloc(2, 2) for _ in range(4)]
    vW = V.alloc()
    for p in range(4):
        A.wait_vm(tk[p])
        for i in range(8):
            A('v_lshlrev_b32 %s, 16, %s' % (v(U + 16 * p + 2 * i), v(vX + 8 * p + i)))
            A('v_and_b32 %s, 0xffff0000, %s' % (v(U + 16 * p + 2 * i + 1), v(vX + 8 * p + i)))
        A('v_pk_add_f32 %s, %s, %s' % (v(sq[p], 2), v(U + 16 * p, 2), v(U + 16 * p + 2, 2)))
        for i in range(2, 8):
            A('v_pk_add_f32 %s, %s, %s' % (v(sq[p], 2), v(sq[p], 2), v(U + 16 * p + 2 * i, 2)))
        A('v_add_f32 %s, %s, %s' % (v(sm[p]), v(sq[p]), v(sq[p] + 1)))
    allreduce32(A, sm, tm)
    for p in range(4):
        A('v_mul_f32 %s, %s, %s' % (v(sm[p]), f32(1.0 / 448), v(sm[p])))
    for p in range(4):
        round_bf16(A, mb[p], sm[p])
    for p in range(4):
        A('v_sub_f32 %s, %s, %s' % (v(dl[p]), v(sm[p]), v(mb[p])))
    for p in range(4):
        for i in range(8):
            A('v_pk_add_f32 %s, %s, %s op_sel_hi:[1,0] neg_lo:[0,1] neg_hi:[0,1]' % (
                v(U + 16 * p + 2 * i, 2), v(U + 16 * p + 2 * i, 2), v(mb[p], 2)))
        A('v_pk_mul_f32 %s, %s, %s' % (v(sq[p], 2), v(U + 16 * p, 2), v(U + 16 * p, 2)))
        for i in range(1, 8):
            A('v_pk_fma_f32 %s, %s, %s, %s' % (v(sq[p], 2), v(U + 16 * p + 2 * i, 2), v(U + 16 * p + 2 * i, 2), v(sq[p], 2)))
        A('v_add_f32 %s, %s, %s' % (v(sm[p]), v(sq[p]), v(sq[p] + 1)))
        A('v_mul_f32 %s, %s, %s' % (v(sm[p]), v(sm[p]), v(vMask)))
    allreduce32(A, sm, tm)
    for p in range(4):
        A('v_mul_f32 %s, %s, %s' % (v(sm[p]), f32(1.0 / 448), v(sm[p])))
        A('v_fma_f32 %s, -%s, %s, %s' % (v(sm[p]), v(dl[p]), v(dl[p]), v(sm[p])))
        A('v_max_f32 %s, 0, %s' % (v(sm[p]), v(sm[p])))
    for p in range(4):
        ln_scalars(A, None, sm[p], None)
    A('s_lshl_b32 s27, s20, 3')
    A('v_add_u32 %s, s27, %s' % (v(vW), v(vHH)))
    A('v_mul_u32_u24 %s, %d, %s' % (v(vW), LP, v(vW)))
    A('v_lshl_add_u32 %s, %s, 4, %s' % (v(vW), v(vJ), v(vW)))
    E = V.alloc(8, 4); O = V.alloc(8, 4); PE = V.alloc(4, 4); PO = V.alloc(4, 4)
    for p in range(4):
        a0 = U + 16 * p; b0 = a0 + 8
        A('v_mov_b32 %s, %s' % (v(mb[p]), v(sm[p])))
        for i in range(4):
            A('v_pk_add_f32 %s, %s, %s op_sel:[0,1] op_sel_hi:[1,0]' % (v(E + 2 * i, 2), v(a0 + 2 * i, 2), v(b0 + 6 - 2 * i, 2)))
            A('v_pk_add_f32 %s, %s, %s op_sel:[0,1] op_sel_hi:[1,0] neg_lo:[0,1] neg_hi:[0,1]' % (v(O + 2 * i, 2), v(a0 + 2 * i, 2), v(b0 + 6 - 2 * i, 2)))
        for i in range(4):
            A('v_pk_mul_f32 %s, %s, %s op_sel_hi:[1,0]' % (v(E + 2 * i, 2), v(E + 2 * i, 2), v(mb[p], 2)))
            A('v_pk_mul_f32 %s, %s, %s op_sel_hi:[1,0]' % (v(O + 2 * i, 2), v(O + 2 * i, 2), v(mb[p], 2)))
        for i in range(4):
            A('v_cvt_pk_bf16_f32 %s, %s, %s' % (v(PE + i), v(E + 2 * i), v(E + 2 * i + 1)))
            A('v_cvt_pk_bf16_f32 %s, %s, %s' % (v(PO + i), v(O + 2 * i), v(O + 2 * i + 1)))
        A('ds_write_b128 %s, %s offset:%d' % (v(vW), v(PE, 4), 2 * p * LP))
        A('ds_write_b128 %s, %s offset:%d' % (v(vW), v(PO, 4), 32 * LP + 2 * p * LP))
    V.release(m)
    A('s_waitcnt lgkmcnt(0)')
    A('s_barrier')
    A('s_cmp_eq_u32 s23, 15')
    A('s_cbranch_scc1 K1_END')
    vR = V.alloc()
    A('v_mul_u32_u24 %s, %d, %s' % (v(vR), LP, v(vI)))
    A('v_lshl_add_u32 %s, %s, 4, %s' % (v(vR), v(vG), v(vR)))
    Dre = V.alloc(8, 4); Dim = V.alloc(8, 4)
    AF = V.alloc(4 * 16, 4)
    rt = {}
    def rd(ks):
        for pl in range(2):
            for r in range(2):
                rt[(ks, pl, r)] = A('ds_read_b128 %s, %s offset:%d' % (
                    v(AF + 16 * (ks & 3) + 8 * pl + 4 * r, 4), v(vR), pl * 32 * LP + r * 16 * LP + 64 * ks))
    for ks in range(4):
        rd(ks)
    for ks in range(7):
        A.wait_lg(rt[(ks, 1, 1)])
        b = AF + 16 * (ks & 3)
        for r in range(2):
            c = '0' if ks == 0 else v(Dre + 4 * r, 4)
            A('v_mfma_f32_16x16x32_bf16 %s, %s, %s, %s' % (v(Dre + 4 * r, 4), v(b + 4 * r, 4), v(Cf + 4 * ks, 4), c))
        for r in range(2):
            c = '0' if ks == 0 else v(Dim + 4 * r, 4)
            A('v_mfma_f32_16x16x32_bf16 %s, %s, %s, %s' % (v(Dim + 4 * r, 4), v(b + 8 + 4 * r, 4), v(Sf + 4 * ks, 4), c))
        if ks + 4 < 7:
            rd(ks + 4)
    Xr = V.alloc(4, 4); Xi = V.alloc(4, 4)
    vSt = V.alloc()
    A('v_lshlrev_b32 %s, 18, %s' % (v(vSt), v(vG)))
    A('v_lshl_add_u32 %s, %s, 2, %s' % (v(vSt), v(vK), v(vSt)))
    A('s_lshl_b32 s28, s21, 10')
    A('v_add_u32 %s, s28, %s' % (v(vSt), v(vSt)))
    for i in range(4):
        A('v_cvt_pk_bf16_f32 %s, %s, %s' % (v(Xr + i), v(Dre + 2 * i), v(Dre + 2 * i + 1)))
    for i in range(4):
        A('v_cvt_pk_bf16_f32 %s, %s, %s' % (v(Xi + i), v(Dim + 2 * i), v(Dim + 2 * i + 1)))
    Ore = V.alloc(8, 4); Oim = V.alloc(8, 4)
    for u in range(2):
        A('v_mfma_f32_16x16x32_bf16 %s, %s, %s, 0' % (v(Ore + 4 * u, 4), v(Tc + 4 * u, 4), v(Xr, 4)))
        A('v_mfma_f32_16x16x32_bf16 %s, %s, %s, 0' % (v(Oim + 4 * u, 4), v(Tn + 4 * u, 4), v(Xr, 4)))
    for u in range(2):
        A('v_mfma_f32_16x16x32_bf16 %s, %s, %s, %s' % (v(Ore + 4 * u, 4), v(Ts + 4 * u, 4), v(Xi, 4), v(Ore + 4 * u, 4)))
        A('v_mfma_f32_16x16x32_bf16 %s, %s, %s, %s' % (v(Oim + 4 * u, 4), v(Tc + 4 * u, 4), v(Xi, 4), v(Oim + 4 * u, 4)))
    P = V.alloc(8, 4)
    for u in range(2):
        for r in range(4):
            A('v_cvt_pk_bf16_f32 %s, %s, %s' % (v(P + 4 * u + r), v(Ore + 4 * u + r), v(Oim + 4 * u + r)))
            A('s_mov_b32 s29, 0x%x' % ((16 * u + r) * 65536))
            A('buffer_store_dword %s, %s, s[12:15], s29 offen' % (v(P + 4 * u + r), v(vSt)))
    A.label_nopad('K1_END')
    A('s_endpgm')
    kernels.append(dict(name='k1_kernel', grid=256, block=256, lds=64 * LP, asm=A, nv=V.hi, na=0))


K2_MAIN = 128
K2_PGU = 196
K2_PD = 112
K2_CS = 14
def gen_k2():
    A = Asm(); V = Regs('v', 1, 256)
    tot = K2_MAIN + K2_PGU + K2_PD + K2_CS
    A('s_cmp_ge_u32 s2, %d' % tot)
    A('s_cbranch_scc1 K2_END')
    A('s_load_dwordx4 s[4:7], s[0:1], %d' % KA_WR)
    A('s_load_dwordx4 s[32:35], s[0:1], %d' % KA_WG)
    A('s_load_dwordx2 s[36:37], s[0:1], %d' % KA_WD)
    A('s_load_dwordx2 s[38:39], s[0:1], %d' % KA_WS)
    vL = V.alloc(); vT = V.alloc(); vT2 = V.alloc()
    A('v_and_b32 %s, 63, v0' % v(vL))
    A('v_lshrrev_b32 %s, 6, v0' % v(vT))
    A('v_readfirstlane_b32 s20, %s' % v(vT))
    A('s_cmp_ge_u32 s2, %d' % K2_MAIN)
    A('s_cbranch_scc1 K2_SIDE')
    base_mark = V.mark()
    A('s_and_b32 s21, s2, 31')
    A('s_lshr_b32 s22, s2, 5')
    A('s_lshl_b32 s23, s22, 2')
    A('s_add_u32 s23, s23, s20')
    A('s_cmp_eq_u32 s23, 15')
    A('s_cbranch_scc1 K2_END')
    vI = V.alloc(); vG = V.alloc(); vK = V.alloc(); vA = V.alloc(); vW = V.alloc(); vSt = V.alloc(); vKap = V.alloc()
    A('v_and_b32 %s, 15, %s' % (v(vI), v(vL)))
    A('v_lshrrev_b32 %s, 4, %s' % (v(vG), v(vL)))
    A('s_lshl_b32 s26, s23, 4')
    A('v_add_u32 %s, s26, %s' % (v(vK), v(vI)))
    A('s_lshl_b32 s27, s21, 16')
    A('v_lshlrev_b32 %s, 12, %s' % (v(vA), v(vG)))
    A('v_lshl_add_u32 %s, %s, 2, %s' % (v(vA), v(vK), v(vA)))
    A('v_add_u32 %s, s27, %s' % (v(vA), v(vA)))
    A('v_lshlrev_b32 %s, 7, %s' % (v(vW), v(vG)))
    A('v_add_u32 %s, s21, %s' % (v(vW), v(vW)))
    A('v_mul_u32_u24 %s, 450, %s' % (v(vW), v(vW)))
    A('v_lshl_add_u32 %s, %s, 1, %s' % (v(vW), v(vK), v(vW)))
    A('v_cmp_gt_u32 vcc, 225, %s' % v(vK))
    A('v_mov_b32 %s, 0x%x' % (v(vT), OOB))
    A('v_cndmask_b32 %s, %s, %s, vcc' % (v(vW), v(vT), v(vW)))
    kap = 1.0 / (2048 * 448)
    A('v_mov_b32 %s, %s' % (v(vKap), f32(2 * kap)))
    A('v_mov_b32 %s, %s' % (v(vT), f32(kap)))
    A('v_cmp_eq_u32 vcc, 0, %s' % v(vK))
    A('v_cndmask_b32 %s, %s, %s, vcc' % (v(vKap), v(vKap), v(vT)))
    A('v_cmp_eq_u32 vcc, 224, %s' % v(vK))
    A('v_cndmask_b32 %s, %s, %s, vcc' % (v(vKap), v(vKap), v(vT)))
    A('s_lshl_b32 s27, s21, 10')
    A('v_lshlrev_b32 %s, 17, %s' % (v(vSt), v(vG)))
    A('v_lshl_add_u32 %s, %s, 2, %s' % (v(vSt), v(vK), v(vSt)))
    A('v_add_u32 %s, s27, %s' % (v(vSt), v(vSt)))
    X = V.alloc(16, 4); WR = V.alloc(16, 4); WI = V.alloc(16, 4)
    for i in range(16):
        A('v_mov_b32 %s, 0' % v(WR + i)); A('v_mov_b32 %s, 0' % v(WI + i))
    A('s_waitcnt lgkmcnt(0)')
    srd(A, 8, 38, WS_A1, SZ_A1)
    srd(A, 12, 38, WS_Z2, SZ_Z2)
    srd(A, 16, 4, 0, 2048 * 450)
    srd(A, 40, 6, 0, 2048 * 450)
    for mm in range(4):
        A('s_mov_b32 s25, %d' % (mm * 16384))
        for jj in range(4):
            tx = A('buffer_load_dword %s, %s, s[8:11], s25 offen offset:%d' % (v(X + 4 * mm + jj), v(vA), jj * 1024))
    for rt in range(4):
        for r in range(4):
            A('s_mov_b32 s25, %d' % ((16 * rt + r) * 14400))
            A('buffer_load_short_d16_hi %s, %s, s[16:19], s25 offen' % (v(WR + 4 * rt + r), v(vW)))
            tw = A('buffer_load_short_d16_hi %s, %s, s[40:43], s25 offen' % (v(WI + 4 * rt + r), v(vW)))
    Fc = V.alloc(32, 4); Fs = V.alloc(32, 4)
    m = V.mark()
    bf = V.alloc(16, 2); af = V.alloc(); t0 = V.alloc(2, 2); c0 = V.alloc(2, 2); s0 = V.alloc(2, 2)
    A('v_cvt_f32_u32 %s, %s' % (v(vT), v(vG)))
    for mm in range(4):
        for jj in range(4):
            A('v_mov_b32 %s, %s' % (v(bf + 4 * mm + jj), f32((16 * mm + jj) / 64.0)))
            A('v_fmac_f32 %s, %s, %s' % (v(bf + 4 * mm + jj), f32(4 / 64.0), v(vT)))
    for rt in range(4):
        A('v_cvt_f32_u32 %s, %s' % (v(af), v(vI)))
        if rt:
            A('v_add_f32 %s, %s, %s' % (v(af), f32(16.0 * rt), v(af)))
        for ks in range(2):
            for jp in range(4):
                for e in range(2):
                    A('v_mul_f32 %s, %s, %s' % (v(t0 + e), v(af), v(bf + 8 * ks + 2 * jp + e)))
                for e in range(2):
                    A('v_fract_f32 %s, %s' % (v(t0 + e), v(t0 + e)))
                for e in range(2):
                    A('v_cos_f32 %s, %s' % (v(c0 + e), v(t0 + e)))
                for e in range(2):
                    A('v_sin_f32 %s, %s' % (v(s0 + e), v(t0 + e)))
                A('v_cvt_pk_bf16_f32 %s, %s, %s' % (v(Fc + 8 * rt + 4 * ks + jp), v(c0), v(c0 + 1)))
                A('v_cvt_pk_bf16_f32 %s, %s, %s' % (v(Fs + 8 * rt + 4 * ks + jp), v(s0), v(s0 + 1)))
    V.release(m)
    Xr = V.alloc(8, 4); Xi = V.alloc(8, 4); Xn = V.alloc(8, 4)
    A('s_mov_b32 s44, 0x05040100'); A('s_mov_b32 s45, 0x07060302')
    A.wait_vm(tx)
    for q in range(8):
        A('v_perm_b32 %s, %s, %s, s44' % (v(Xr + q), v(X + 2 * q + 1), v(X + 2 * q)))
        A('v_perm_b32 %s, %s, %s, s45' % (v(Xi + q), v(X + 2 * q + 1), v(X + 2 * q)))
    for q in range(8):
        A('v_xor_b32 %s, 0x80008000, %s' % (v(Xn + q), v(Xr + q)))
    Dr = V.alloc(16, 4); Di = V.alloc(16, 4)
    def cdft(Or, Oi, Br, Bi, BnR, BnI):
        for ks in range(2):
            for rt in range(4):
                A('v_mfma_f32_16x16x32_bf16 %s, %s, %s, %s' % (v(Or + 4 * rt, 4), v(Fc + 8 * rt + 4 * ks, 4), v(Br + 4 * ks, 4), '0' if ks == 0 else v(Or + 4 * rt, 4)))
                A('v_mfma_f32_16x16x32_bf16 %s, %s, %s, %s' % (v(Oi + 4 * rt, 4), v(Fc + 8 * rt + 4 * ks, 4), v(Bi + 4 * ks, 4), '0' if ks == 0 else v(Oi + 4 * rt, 4)))
            for rt in range(4):
                A('v_mfma_f32_16x16x32_bf16 %s, %s, %s, %s' % (v(Or + 4 * rt, 4), v(Fs + 8 * rt + 4 * ks, 4), v(BnR + 4 * ks, 4), v(Or + 4 * rt, 4)))
                A('v_mfma_f32_16x16x32_bf16 %s, %s, %s, %s' % (v(Oi + 4 * rt, 4), v(Fs + 8 * rt + 4 * ks, 4), v(BnI + 4 * ks, 4), v(Oi + 4 * rt, 4)))
    cdft(Dr, Di, Xr, Xi, Xi, Xn)
    A.wait_vm(tw)
    for i in range(16):
        A('v_mul_f32 %s, %s, %s' % (v(WR + i), v(WR + i), v(vKap)))
        A('v_mul_f32 %s, %s, %s' % (v(WI + i), v(WI + i), v(vKap)))
    Yr = V.alloc(16, 4); Yi = V.alloc(16, 4)
    for i in range(16):
        A('v_mul_f32 %s, %s, %s' % (v(Yr + i), v(Dr + i), v(WR + i)))
        A('v_mul_f32 %s, %s, %s' % (v(Yi + i), v(Dr + i), v(WI + i)))
        A('v_fma_f32 %s, -%s, %s, %s' % (v(Yr + i), v(Di + i), v(WI + i), v(Yr + i)))
        A('v_fma_f32 %s, %s, %s, %s' % (v(Yi + i), v(Di + i), v(WR + i), v(Yi + i)))
    for q in range(8):
        A('v_cvt_pk_bf16_f32 %s, %s, %s' % (v(Xr + q), v(Yr + 2 * q), v(Yr + 2 * q + 1)))
        A('v_cvt_pk_bf16_f32 %s, %s, %s' % (v(Xi + q), v(Yi + 2 * q), v(Yi + 2 * q + 1)))
        A('v_cvt_pk_bf16_f32 %s, -%s, -%s' % (v(Xn + q), v(Yi + 2 * q), v(Yi + 2 * q + 1)))
    cdft(Dr, Di, Xr, Xi, Xn, Xr)
    for rt in range(4):
        for r in range(4):
            A('v_cvt_pk_bf16_f32 %s, %s, %s' % (v(Yr + 4 * rt + r), v(Dr + 4 * rt + r), v(Di + 4 * rt + r)))
            A('s_mov_b32 s25, 0x%x' % ((16 * rt + r) * 32768))
            A('buffer_store_dword %s, %s, s[12:15], s25 offen' % (v(Yr + 4 * rt + r), v(vSt)))
    A('s_endpgm')
    A.label('K2_SIDE'); A.reset()
    V.release(base_mark)
    A('s_waitcnt lgkmcnt(0)')
    A('s_mov_b32 s44, 0x05040100'); A('s_mov_b32 s45, 0x07060302')
    A('s_cmp_ge_u32 s2, %d' % (K2_MAIN + K2_PGU))
    A('s_cbranch_scc1 K2_PACKD')
    A('s_sub_u32 s21, s2, %d' % K2_MAIN)
    A('s_lshl_b32 s21, s21, 2')
    A('s_add_u32 s21, s21, s20')
    A('s_cmp_ge_u32 s21, 392')
    A('s_cselect_b32 s22, 392, 0')
    A('s_cselect_b32 s46, s34, s32')
    A('s_cselect_b32 s47, s35, s33')
    A('s_cselect_b32 s48, 0x%x, 0' % (WS_WU - WS_WG))
    A('s_add_u32 s48, s48, 0x%x' % WS_WG)
    A('s_sub_u32 s21, s21, s22')
    A('s_mul_i32 s23, s21, 9363')
    A('s_lshr_b32 s23, s23, 16')
    A('s_mul_i32 s24, s23, 7')
    A('s_sub_u32 s24, s21, s24')
    srd(A, 8, 46, 0, SZ_W)
    A('s_add_u32 s12, s38, s48'); A('s_addc_u32 s13, s39, 0'); A('s_mov_b32 s14, 0x%x' % SZ_W); A('s_mov_b32 s15, 0x00020000')
    vS = V.alloc(); vD = V.alloc()
    A('s_mul_i32 s25, s23, %d' % (8 * 3584))
    A('s_lshl_b32 s26, s24, 9')
    A('s_add_u32 s25, s25, s26')
    A('v_lshlrev_b32 %s, 3, %s' % (v(vS), v(vL)))
    A('v_add_u32 %s, s25, %s' % (v(vS), v(vS)))
    A('v_lshrrev_b32 %s, 3, %s' % (v(vT), v(vL)))
    A('s_lshl_b32 s26, s24, 3')
    A('v_add_u32 %s, s26, %s' % (v(vT), v(vT)))
    A('v_mul_u32_u24 %s, %d, %s' % (v(vT), 28 * 1024, v(vT)))
    A('v_and_b32 %s, 7, %s' % (v(vT2), v(vL)))
    A('v_lshl_add_u32 %s, %s, 6, %s' % (v(vD), v(vT2), v(vT)))
    A('s_lshl_b32 s26, s23, 9')
    A('v_add_u32 %s, s26, %s' % (v(vD), v(vD)))
    L = V.alloc(16, 4); O = V.alloc(16, 4)
    def pack_body(rowoffs):
        for j in range(8):
            A('s_mov_b32 s25, %d' % rowoffs[j])
            tl = A('buffer_load_dwordx2 %s, %s, s[8:11], s25 offen' % (v(L + 2 * j, 2), v(vS)))
        A.wait_vm(tl)
        for n in range(4):
            for dw in range(4):
                lo = L + 2 * (2 * dw) + (n >> 1); hi = L + 2 * (2 * dw + 1) + (n >> 1)
                A('v_perm_b32 %s, %s, %s, %s' % (v(O + 4 * n + dw), v(hi), v(lo), 's45' if n & 1 else 's44'))
        for n in range(4):
            A('buffer_store_dwordx4 %s, %s, s[12:15], 0 offen offset:%d' % (v(O + 4 * n, 4), v(vD), 16 * n))
        A('s_endpgm')
    pack_body([j * 3584 for j in range(8)])
    A.label('K2_PACKD'); A.reset()
    A('s_cmp_ge_u32 s2, %d' % (K2_MAIN + K2_PGU + K2_PD))
    A('s_cbranch_scc1 K2_COLSUM')
    A('s_sub_u32 s21, s2, %d' % (K2_MAIN + K2_PGU))
    A('s_lshl_b32 s21, s21, 2')
    A('s_add_u32 s21, s21, s20')
    A('s_and_b32 s24, s21, 1')
    A('s_lshr_b32 s23, s21, 1')
    srd(A, 8, 36, 0, SZ_W)
    srd(A, 12, 38, WS_WD, SZ_W)
    A('s_lshr_b32 s25, s23, 1')
    A('s_and_b32 s26, s23, 1')
    A('s_lshl_b32 s25, s25, 4'); A('s_lshl_b32 s26, s26, 2'); A('s_add_u32 s25, s25, s26')
    A('s_mul_i32 s25, s25, 896')
    A('s_mul_i32 s26, s24, 448')
    A('s_add_u32 s25, s25, s26')
    A('v_lshlrev_b32 %s, 3, %s' % (v(vS), v(vL)))
    A('v_add_u32 %s, s25, %s' % (v(vS), v(vS)))
    A('v_lshrrev_b32 %s, 3, %s' % (v(vT), v(vL)))
    A('s_mul_i32 s26, s24, 7')
    A('v_add_u32 %s, s26, %s' % (v(vT), v(vT)))
    A('s_mov_b32 s26, %d' % (112 * 1024))
    A('v_mul_lo_u32 %s, %s, s26' % (v(vT), v(vT)))
    A('v_and_b32 %s, 7, %s' % (v(vT2), v(vL)))
    A('v_lshl_add_u32 %s, %s, 6, %s' % (v(vD), v(vT2), v(vT)))
    A('s_lshl_b32 s26, s23, 9')
    A('v_add_u32 %s, s26, %s' % (v(vD), v(vD)))
    A('v_cmp_gt_u32 vcc, 56, %s' % v(vL))
    A('v_mov_b32 %s, 0x%x' % (v(vT), OOB))
    A('v_cndmask_b32 %s, %s, %s, vcc' % (v(vS), v(vT), v(vS)))
    A('v_cndmask_b32 %s, %s, %s, vcc' % (v(vD), v(vT), v(vD)))
    pack_body([(8 * (j >> 2) + (j & 3)) * 896 for j in range(8)])
    A.label('K2_COLSUM'); A.reset()
    A('s_sub_u32 s21, s2, %d' % (K2_MAIN + K2_PGU + K2_PD))
    A('s_cmp_ge_u32 s21, 7')
    A('s_cselect_b32 s22, 7, 0')
    A('s_cselect_b32 s46, s34, s32')
    A('s_cselect_b32 s47, s35, s33')
    A('s_sub_u32 s24, s21, s22')
    srd(A, 8, 46, 0, SZ_W)
    srd(A, 12, 38, WS_CS, SZ_CS)
    A('s_mul_i32 s25, s20, %d' % (112 * 3584))
    A('s_lshl_b32 s26, s24, 9')
    A('s_add_u32 s25, s25, s26')
    A('v_lshlrev_b32 %s, 3, %s' % (v(vS), v(vL)))
    A('v_add_u32 %s, s25, %s' % (v(vS), v(vS)))
    m = V.mark()
    LL = V.alloc(112, 4); acc = V.alloc(4, 4); un = V.alloc(4, 4)
    for i in range(4):
        A('v_mov_b32 %s, 0' % v(acc + i))
    for half in range(2):
        tks = []
        for j in range(56):
            A('s_mov_b32 s25, %d' % ((56 * half + j) * 3584))
            tks.append(A('buffer_load_dwordx2 %s, %s, s[8:11], s25 offen' % (v(LL + 2 * j, 2), v(vS))))
        for j in range(56):
            if j % 8 == 0:
                A.wait_vm(tks[j + 7])
            A('v_lshlrev_b32 %s, 16, %s' % (v(un), v(LL + 2 * j)))
            A('v_and_b32 %s, 0xffff0000, %s' % (v(un + 1), v(LL + 2 * j)))
            A('v_lshlrev_b32 %s, 16, %s' % (v(un + 2), v(LL + 2 * j + 1)))
            A('v_and_b32 %s, 0xffff0000, %s' % (v(un + 3), v(LL + 2 * j + 1)))
            A('v_pk_add_f32 %s, %s, %s' % (v(acc, 2), v(acc, 2), v(un, 2)))
            A('v_pk_add_f32 %s, %s, %s' % (v(acc + 2, 2), v(acc + 2, 2), v(un + 2, 2)))
    A('v_lshlrev_b32 %s, 4, v0' % v(vT))
    A('ds_write_b128 %s, %s' % (v(vT), v(acc, 4)))
    A('s_waitcnt lgkmcnt(0)')
    A('s_barrier')
    A('s_cmp_lg_u32 s20, 0')
    A('s_cbranch_scc1 K2_END')
    for w in range(1, 4):
        A('ds_read_b128 %s, %s offset:%d' % (v(LL + 4 * w, 4), v(vT), 1024 * w))
    A('s_waitcnt lgkmcnt(0)')
    for w in range(1, 4):
        A('v_pk_add_f32 %s, %s, %s' % (v(acc, 2), v(acc, 2), v(LL + 4 * w, 2)))
        A('v_pk_add_f32 %s, %s, %s' % (v(acc + 2, 2), v(acc + 2, 2), v(LL + 4 * w + 2, 2)))
    A('s_lshl_b32 s25, s21, 10')
    A('buffer_store_dwordx4 %s, %s, s[12:15], s25 offen' % (v(acc, 4), v(vT)))
    A.label_nopad('K2_END')
    A('s_endpgm')
    kernels.append(dict(name='k2_kernel', grid=tot, block=256, lds=4096, asm=A, nv=V.hi, na=0))


def gen_k3():
    A = Asm(); V = Regs('v', 1, 256)
    A('s_cmp_ge_u32 s2, 256')
    A('s_cbranch_scc1 K3_END')
    A('s_load_dwordx2 s[4:5], s[0:1], %d' % KA_X)
    A('s_load_dwordx2 s[6:7], s[0:1], %d' % KA_WS)
    vL = V.alloc(); vT = V.alloc(); vT2 = V.alloc()
    A('v_and_b32 %s, 63, v0' % v(vL))
    A('v_lshrrev_b32 %s, 6, v0' % v(vT))
    A('v_readfirstlane_b32 s20, %s' % v(vT))
    A('s_and_b32 s21, s2, 63')
    A('s_lshr_b32 s22, s2, 6')
    A('s_lshl_b32 s23, s22, 2')
    A('s_add_u32 s23, s23, s20')
    A('s_mov_b32 %s, %s' % (s(SC16), f32(16.0)))
    A('s_mov_b32 %s, %s' % (s(SCM896), f32(-896.0)))
    vI = V.alloc(); vG = V.alloc(); vGf = V.alloc(); vZ = V.alloc(); vXa = V.alloc(); vXb = V.alloc()
    A('v_and_b32 %s, 15, %s' % (v(vI), v(vL)))
    A('v_lshrrev_b32 %s, 4, %s' % (v(vG), v(vL)))
    A('v_cvt_f32_u32 %s, %s' % (v(vGf), v(vG)))
    A('s_lshl_b32 s24, s21, 15')
    A('s_lshl_b32 s25, s20, 6')
    A('s_add_u32 s24, s24, s25')
    A('v_lshlrev_b32 %s, 12, %s' % (v(vZ), v(vG)))
    A('v_lshl_add_u32 %s, %s, 2, %s' % (v(vZ), v(vI), v(vZ)))
    A('v_add_u32 %s, s24, %s' % (v(vZ), v(vZ)))
    A('v_lshlrev_b32 %s, 6, %s' % (v(vT), v(vI)))
    A('v_add_u32 %s, s21, %s' % (v(vT), v(vT)))
    A('v_mul_u32_u24 %s, 896, %s' % (v(vT), v(vT)))
    A('s_lshl_b32 s24, s23, 5')
    A('v_lshlrev_b32 %s, 3, %s' % (v(vT2), v(vG)))
    A('v_add_u32 %s, s24, %s' % (v(vT2), v(vT2)))
    A('v_add_u32 %s, %s, %s' % (v(vXa), v(vT), v(vT2)))
    A('v_sub_u32 %s, %s, %s' % (v(vXb), v(vT), v(vT2)))
    A('v_add_u32 %s, 888, %s' % (v(vXb), v(vXb)))
    A('s_waitcnt lgkmcnt(0)')
    srd(A, 8, 4, 0, S_ * D_ * 2)
    srd(A, 12, 6, WS_Z2, SZ_Z2)
    srd(A, 16, 6, WS_H, SZ_H)
    ZL = V.alloc(32, 4)
    tz = []
    for q in range(4):
        for ks in range(2):
            A('s_mov_b32 s25, %d' % (ks * 16384 + 256 * q))
            if q == 3:
                A('s_cmp_eq_u32 s20, 3')
                A('s_cselect_b32 s25, 0x%x, s25' % OOB)
            for jj in range(4):
                tk = A('buffer_load_dword %s, %s, s[12:15], s25 offen offset:%d' % (v(ZL + 8 * q + 4 * ks + jj), v(vZ), jj * 1024))
        tz.append(tk)
    XL = V.alloc(8, 4)
    A('s_cmp_ge_u32 s23, 14')
    A('s_cselect_b32 s26, 0x%x, 0' % OOB)
    A('s_add_u32 s27, s26, %d' % (16 * 64 * 896))
    A('buffer_load_dwordx2 %s, %s, s[8:11], s26 offen' % (v(XL, 2), v(vXa)))
    A('buffer_load_dwordx2 %s, %s, s[8:11], s26 offen' % (v(XL + 2, 2), v(vXb)))
    A('buffer_load_dwordx2 %s, %s, s[8:11], s27 offen' % (v(XL + 4, 2), v(vXa)))
    txl = A('buffer_load_dwordx2 %s, %s, s[8:11], s27 offen' % (v(XL + 6, 2), v(vXb)))
    TB = V.alloc(32, 4)
    m = V.mark()
    sf = V.alloc(2, 2); k1f = V.alloc(8, 2); t0 = V.alloc(2, 2); c0 = V.alloc(2, 2); s0 = V.alloc(2, 2)
    A('v_lshlrev_b32 %s, 6, %s' % (v(vT), v(vI)))
    A('v_add_u32 %s, s21, %s' % (v(vT), v(vT)))
    A('v_cvt_f32_u32 %s, %s' % (v(sf), v(vT)))
    A('v_add_f32 %s, %s, %s' % (v(sf + 1), f32(1024.0), v(sf)))
    for ks in range(2):
        for jj in range(4):
            A('v_mov_b32 %s, %s' % (v(k1f + 4 * ks + jj), f32((16 * ks + jj) / 2048.0)))
            A('v_fmac_f32 %s, %s, %s' % (v(k1f + 4 * ks + jj), f32(4 / 2048.0), v(vGf)))
    for u in range(2):
        for ks in range(2):
            for jp in range(2):
                for e in range(2):
                    A('v_mul_f32 %s, %s, %s' % (v(t0 + e), v(sf + u), v(k1f + 4 * ks + 2 * jp + e)))
                for e in range(2):
                    A('v_fract_f32 %s, %s' % (v(t0 + e), v(t0 + e)))
                for e in range(2):
                    A('v_cos_f32 %s, %s' % (v(c0 + e), v(t0 + e)))
                for e in range(2):
                    A('v_sin_f32 %s, %s' % (v(s0 + e), v(t0 + e)))
                for e in range(2):
                    A('v_cvt_pk_bf16_f32 %s, %s, -%s' % (v(TB + 16 * u + 4 * ks + 2 * jp + e), v(c0 + e), v(s0 + e)))
                    A('v_cvt_pk_bf16_f32 %s, %s, %s' % (v(TB + 16 * u + 8 + 4 * ks + 2 * jp + e), v(s0 + e), v(c0 + e)))
    V.release(m)
    Cf = V.alloc(28, 4); Sf = V.alloc(28, 4)
    vDf = V.alloc()
    A('s_lshl_b32 s24, s23, 5')
    A('v_lshl_add_u32 %s, %s, 1, s24' % (v(vDf), v(vI)))
    A('v_add_u32 %s, 1, %s' % (v(vDf), v(vDf)))
    A('v_cvt_f32_u32 %s, %s' % (v(vDf), v(vDf)))
    A('s_cmp_ge_u32 s23, 14')
    A('s_cbranch_scc1 K3_SKIPGEN')
    gen_rowdft_frags(A, V, vDf, vGf, False, Cf, Sf, True)
    A.label('K3_SKIPGEN')
    vW = V.alloc()
    A('v_mul_u32_u24 %s, %d, %s' % (v(vW), LP, v(vI)))
    A('v_lshl_add_u32 %s, %s, 3, %s' % (v(vW), v(vG), v(vW)))
    A('s_lshl_b32 s24, s20, 5')
    A('v_add_u32 %s, s24, %s' % (v(vW), v(vW)))
    m = V.mark()
    DD = V.alloc(32, 4); PK = V.alloc(16, 4)
    for q in range(4):
        A.wait_vm(tz[q])
        Dq = DD + 16 * (q & 1)
        for ks in range(2):
            for u in range(2):
                for po in range(2):
                    d = Dq + 8 * u + 4 * po
                    A('v_mfma_f32_16x16x32_bf16 %s, %s, %s, %s' % (v(d, 4), v(ZL + 8 * q + 4 * ks, 4), v(TB + 16 * u + 8 * po + 4 * ks, 4), '0' if ks == 0 else v(d, 4)))
        if q >= 1:
            qq = q - 1
            Dp = DD + 16 * (qq & 1); Pp = PK + 8 * (qq & 1)
            for u in range(2):
                for po in range(2):
                    d = Dp + 8 * u + 4 * po; p = Pp + 4 * u + 2 * po
                    A('v_cvt_pk_bf16_f32 %s, %s, %s' % (v(p), v(d), v(d + 1)))
                    A('v_cvt_pk_bf16_f32 %s, %s, %s' % (v(p + 1), v(d + 2), v(d + 3)))
                    A('ds_write_b64 %s, %s offset:%d' % (v(vW), v(p, 2), po * 32 * LP + u * 16 * LP + 128 * qq))
    qq = 3
    Dp = DD + 16 * (qq & 1); Pp = PK + 8 * (qq & 1)
    for u in range(2):
        for po in range(2):
            d = Dp + 8 * u + 4 * po; p = Pp + 4 * u + 2 * po
            A('v_cvt_pk_bf16_f32 %s, %s, %s' % (v(p), v(d), v(d + 1)))
            A('v_cvt_pk_bf16_f32 %s, %s, %s' % (v(p + 1), v(d + 2), v(d + 3)))
            A('ds_write_b64 %s, %s offset:%d' % (v(vW), v(p, 2), po * 32 * LP + u * 16 * LP + 128 * qq))
    V.release(m)
    A('s_waitcnt lgkmcnt(0)')
    A('s_barrier')
    A('s_cmp_ge_u32 s23, 14')
    A('s_cbranch_scc1 K3_END')
    vR = V.alloc(); vN = V.alloc(2, 2)
    A('v_mul_u32_u24 %s, %d, %s' % (v(vR), LP, v(vI)))
    Pd = V.alloc(8, 4); Qd = V.alloc(8, 4)
    tn0 = A('ds_read_u16 %s, %s offset:%d' % (v(vN), v(vR), 32 * LP + 448))
    tn1 = A('ds_read_u16 %s, %s offset:%d' % (v(vN + 1), v(vR), 32 * LP + 16 * LP + 448))
    A('v_lshl_add_u32 %s, %s, 4, %s' % (v(vR), v(vG), v(vR)))
    BF = V.alloc(64, 4)
    rt = {}
    def rd(ks):
        for pl in range(2):
            for u in range(2):
                rt[(ks, pl, u)] = A('ds_read_b128 %s, %s offset:%d' % (
                    v(BF + 16 * (ks & 3) + 8 * pl + 4 * u, 4), v(vR), pl * 32 * LP + u * 16 * LP + 64 * ks))
    for ks in range(3):
        rd(ks)
    A.wait_lg(tn1)
    for u in range(2):
        A('v_lshlrev_b32 %s, 16, %s' % (v(Qd + 4 * u), v(vN + u)))
        A('v_xor_b32 %s, 0x80000000, %s' % (v(Qd + 4 * u + 1), v(Qd + 4 * u)))
        A('v_mov_b32 %s, %s' % (v(Qd + 4 * u + 2), v(Qd + 4 * u)))
        A('v_mov_b32 %s, %s' % (v(Qd + 4 * u + 3), v(Qd + 4 * u + 1)))
    rd(3)
    for ks in range(7):
        A.wait_lg(rt[(ks, 1, 1)])
        b = BF + 16 * (ks & 3)
        for u in range(2):
            A('v_mfma_f32_16x16x32_bf16 %s, %s, %s, %s' % (v(Pd + 4 * u, 4), v(Cf + 4 * ks, 4), v(b + 4 * u, 4), '0' if ks == 0 else v(Pd + 4 * u, 4)))
        for u in range(2):
            A('v_mfma_f32_16x16x32_bf16 %s, %s, %s, %s' % (v(Qd + 4 * u, 4), v(Sf + 4 * ks, 4), v(b + 8 + 4 * u, 4), v(Qd + 4 * u, 4)))
        if ks + 4 < 7:
            rd(ks + 4)
    A.wait_vm(txl)
    XU = ZL
    for u in range(2):
        for hf in range(2):
            for dw in range(2):
                src = XL + 4 * u + 2 * hf + dw
                A('v_lshlrev_b32 %s, 16, %s' % (v(XU + 8 * u + 4 * hf + 2 * dw), v(src)))
                A('v_and_b32 %s, 0xffff0000, %s' % (v(XU + 8 * u + 4 * hf + 2 * dw + 1), v(src)))
    Y = ZL + 16; HO = TB
    for u in range(2):
        for r in range(4):
            A('v_sub_f32 %s, %s, %s' % (v(Y + 8 * u + r), v(Pd + 4 * u + r), v(Qd + 4 * u + r)))
            A('v_add_f32 %s, %s, %s' % (v(Y + 8 * u + 4 + (3 - r)), v(Pd + 4 * u + r), v(Qd + 4 * u + r)))
    for i in range(8):
        A('v_cvt_pk_bf16_f32 %s, %s, %s' % (v(HO + i), v(Y + 2 * i), v(Y + 2 * i + 1)))
    for i in range(8):
        A('v_lshlrev_b32 %s, 16, %s' % (v(Y + 2 * i), v(HO + i)))
        A('v_and_b32 %s, 0xffff0000, %s' % (v(Y + 2 * i + 1), v(HO + i)))
    for i in range(8):
        A('v_pk_add_f32 %s, %s, %s' % (v(Y + 2 * i, 2), v(Y + 2 * i, 2), v(XU + 2 * i, 2)))
    for i in range(8):
        A('v_cvt_pk_bf16_f32 %s, %s, %s' % (v(HO + i), v(Y + 2 * i), v(Y + 2 * i + 1)))
    A('s_mov_b32 s27, %d' % (16 * 64 * 896))
    A('buffer_store_dwordx2 %s, %s, s[16:19], 0 offen' % (v(HO, 2), v(vXa)))
    A('buffer_store_dwordx2 %s, %s, s[16:19], 0 offen' % (v(HO + 2, 2), v(vXb)))
    A('buffer_store_dwordx2 %s, %s, s[16:19], s27 offen' % (v(HO + 4, 2), v(vXa)))
    A('buffer_store_dwordx2 %s, %s, s[16:19], s27 offen' % (v(HO + 6, 2), v(vXb)))
    A.label_nopad('K3_END')
    A('s_endpgm')
    kernels.append(dict(name='k3_kernel', grid=256, block=256, lds=64 * LP, asm=A, nv=V.hi, na=0))


def gen_k4():
    A = Asm(); V = Regs('v', 1, 256)
    A('s_cmp_ge_u32 s2, 224')
    A('s_cbranch_scc1 K4_END')
    A('s_load_dwordx2 s[6:7], s[0:1], %d' % KA_WS)
    vL = V.alloc(); vT = V.alloc(); vT2 = V.alloc()
    A('v_and_b32 %s, 63, v0' % v(vL))
    A('v_lshrrev_b32 %s, 6, v0' % v(vT))
    A('v_readfirstlane_b32 s20, %s' % v(vT))
    A('s_and_b32 s21, s2, 7')
    A('s_lshr_b32 s22, s2, 3')
    A('s_lshr_b32 s23, s21, 1'); A('s_lshl_b32 s23, s23, 2'); A('s_and_b32 s24, s22, 3'); A('s_add_u32 s23, s23, s24')
    A('s_and_b32 s24, s21, 1'); A('s_mul_i32 s24, s24, 7'); A('s_lshr_b32 s25, s22, 2'); A('s_add_u32 s24, s24, s25')
    A('s_lshl_b32 s25, s24, 2'); A('s_add_u32 s25, s25, s20')
    vDe = V.alloc(); vDo = V.alloc(); vWt = V.alloc(); vCs = V.alloc()
    A('v_lshrrev_b32 %s, 3, %s' % (v(vT), v(vL)))
    A('v_lshrrev_b32 %s, 1, %s' % (v(vT2), v(vT)))
    A('v_xor_b32 %s, %s, %s' % (v(vT2), v(vT2), v(vL)))
    A('v_and_b32 %s, 7, %s' % (v(vT2), v(vT2)))
    A('s_lshl_b32 s26, s23, 7'); A('s_lshl_b32 s27, s20, 5'); A('s_add_u32 s26, s26, s27')
    A('v_add_u32 %s, s26, %s' % (v(vT), v(vT)))
    A('v_mul_u32_u24 %s, 896, %s' % (v(vT), v(vT)))
    A('v_lshl_add_u32 %s, %s, 4, %s' % (v(vDe), v(vT2), v(vT)))
    A('v_xor_b32 %s, 4, %s' % (v(vT2), v(vT2)))
    A('v_lshl_add_u32 %s, %s, 4, %s' % (v(vDo), v(vT2), v(vT)))
    A('s_mul_i32 s26, s25, %d' % (28 * 1024))
    A('v_lshlrev_b32 %s, 4, %s' % (v(vWt), v(vL)))
    A('v_add_u32 %s, s26, %s' % (v(vWt), v(vWt)))
    vH = V.alloc(); vI = V.alloc()
    A('v_lshrrev_b32 %s, 5, %s' % (v(vH), v(vL)))
    A('v_and_b32 %s, 31, %s' % (v(vI), v(vL)))
    A('s_lshl_b32 s26, s25, 7')
    A('v_lshlrev_b32 %s, 4, %s' % (v(vCs), v(vH)))
    A('v_add_u32 %s, s26, %s' % (v(vCs), v(vCs)))
    vR = [V.alloc() for _ in range(4)]; vRS = [V.alloc() for _ in range(4)]
    A('v_lshrrev_b32 %s, 3, %s' % (v(vT), v(vI)))
    A('v_lshlrev_b32 %s, 10, %s' % (v(vT), v(vT)))
    A('v_and_b32 %s, 7, %s' % (v(vT2), v(vI)))
    A('v_lshl_add_u32 %s, %s, 7, %s' % (v(vT), v(vT2), v(vT)))
    A('v_bfe_u32 %s, %s, 1, 3' % (v(vT2), v(vI)))
    A('v_xor_b32 %s, %s, %s' % (v(vT2), v(vT2), v(vH)))
    A('s_lshl_b32 s26, s20, 12')
    for kq in range(4):
        A('v_xor_b32 %s, %d, %s' % (v(vR[kq]), 2 * kq, v(vT2)))
        A('v_lshl_add_u32 %s, %s, 4, %s' % (v(vR[kq]), v(vR[kq]), v(vT)))
        A('v_add_u32 %s, s26, %s' % (v(vRS[kq]), v(vR[kq])))
    A('s_waitcnt lgkmcnt(0)')
    srd(A, 8, 6, WS_H, SZ_H)
    srd(A, 12, 6, WS_WG, SZ_W)
    srd(A, 16, 6, WS_WU, SZ_W)
    srd(A, 28, 6, WS_CS, SZ_CS)
    srd(A, 32, 6, WS_HP, SZ_HP)
    CSG = V.alloc(16, 4); CSU = V.alloc(16, 4)
    A('s_lshl_b32 s36, s20, 12')
    tW = {}; tH = {}
    def issue(kb):
        for rgl in range(4):
            A('s_add_u32 m0, s36, %d' % (kb * 16384 + rgl * 1024))
            A('s_mov_b32 s37, %d' % (rgl * 8 * 896 + kb * 128))
            tH[kb] = A('buffer_load_dwordx4 %s, s[8:11], s37 offen lds' % v(vDo if rgl & 1 else vDe))
        for kq in range(4):
            ks = 4 * kb + kq
            A('s_mov_b32 s37, %d' % (ks * 1024))
            A('buffer_load_dwordx4 %s, %s, s[12:15], s37 offen' % (a(8 * ks, 4), v(vWt)))
            tW[ks] = A('buffer_load_dwordx4 %s, %s, s[16:19], s37 offen' % (a(8 * ks + 4, 4), v(vWt)))
    for kb in range(4):
        issue(kb)
    for q in range(4):
        A('buffer_load_dwordx4 %s, %s, s[28:31], 0 offen offset:%d' % (v(CSG + 4 * q, 4), v(vCs), 32 * q))
    A('s_mov_b32 s37, %d' % (F_ * 4))
    for q in range(4):
        tcs = A('buffer_load_dwordx4 %s, %s, s[28:31], s37 offen offset:%d' % (v(CSU + 4 * q, 4), v(vCs), 32 * q))
    AG = V.alloc(64, 4); AU = V.alloc(64, 4)
    BF = V.alloc(40, 4)
    sSum = V.alloc(); sSq = V.alloc(); vOne = V.alloc()
    A('v_mov_b32 %s, 0' % v(sSum)); A('v_mov_b32 %s, 0' % v(sSq)); A('v_mov_b32 %s, 0x3f803f80' % v(vOne))
    tB = {}
    def rdB(ks):
        kb, kq = ks >> 2, ks & 3
        off = (kb & 3) * 16384
        b = BF + 20 * (ks & 1)
        for ct in range(4):
            tB[(ks, ct)] = A('ds_read_b128 %s, %s offset:%d' % (v(b + 4 * ct, 4), v(vR[kq]), off + ct * 4096))
        tB[(ks, 4)] = A('ds_read_b128 %s, %s offset:%d' % (v(b + 16, 4), v(vRS[kq]), off))
    A.wait_vm(tH[0])
    A('s_barrier')
    rdB(0)
    for ks in range(28):
        kb, kq = ks >> 2, ks & 3
        if ks + 1 < 28:
            if kq == 3:
                A.wait_vm(tH[kb + 1])
                A('s_barrier')
                if kb + 1 == 4:
                    for r in vR + vRS:
                        A('v_add_u32 %s, 0x10000, %s' % (v(r), v(r)))
            rdB(ks + 1)
        A.wait_vm(tW[ks])
        A.wait_lg(tB[(ks, 4)])
        b = BF + 20 * (ks & 1)
        dots = []
        for i in range(4):
            dots.append('v_dot2_f32_bf16 %s, %s, %s, %s' % (v(sSum), v(b + 16 + i), v(vOne), v(sSum)))
            dots.append('v_dot2_f32_bf16 %s, %s, %s, %s' % (v(sSq), v(b + 16 + i), v(b + 16 + i), v(sSq)))
        for ct in range(4):
            A('v_mfma_f32_32x32x16_bf16 %s, %s, %s, %s' % (v(AG + 16 * ct, 16), a(8 * ks, 4), v(b + 4 * ct, 4), '0' if ks == 0 else v(AG + 16 * ct, 16)))
            A(dots[2 * ct])
            A('v_mfma_f32_32x32x16_bf16 %s, %s, %s, %s' % (v(AU + 16 * ct, 16), a(8 * ks + 4, 4), v(b + 4 * ct, 4), '0' if ks == 0 else v(AU + 16 * ct, 16)))
            A(dots[2 * ct + 1])
        if kq == 0 and kb + 4 < 7:
            issue(kb + 4)
    STAT = 7 * 16384
    A('v_mov_b32 %s, %s' % (v(vT), v(sSum))); A('v_mov_b32 %s, %s' % (v(vT2), v(sSq)))
    A('v_permlane32_swap_b32 %s, %s' % (v(sSum), v(vT)))
    A('v_permlane32_swap_b32 %s, %s' % (v(sSq), v(vT2)))
    A('v_add_f32 %s, %s, %s' % (v(sSum), v(sSum), v(vT)))
    A('v_add_f32 %s, %s, %s' % (v(sSq), v(sSq), v(vT2)))
    A('v_mul_f32 %s, %s, %s' % (v(sSum), f32(1.0 / 448), v(sSum)))
    A('v_mul_f32 %s, %s, %s' % (v(sSq), f32(1.0 / 448), v(sSq)))
    A('v_fma_f32 %s, -%s, %s, %s' % (v(sSq), v(sSum), v(sSum), v(sSq)))
    A('v_max_f32 %s, 0, %s' % (v(sSq), v(sSq)))
    ST = V.alloc(2, 2)
    round_bf16(A, ST, sSum)
    ln_scalars(A, None, sSq, None)
    A('v_mov_b32 %s, %s' % (v(ST + 1), v(sSq)))
    A('s_lshl_b32 s26, s20, 8')
    A('v_lshlrev_b32 %s, 3, %s' % (v(vT), v(vI)))
    A('v_add_u32 %s, s26, %s' % (v(vT2), v(vT)))
    A('v_add_u32 %s, 0x%x, %s' % (v(vT2), STAT, v(vT2)))
    A('v_add_u32 %s, 0x%x, %s' % (v(vT), STAT, v(vT)))
    A('ds_write_b64 %s, %s' % (v(vT2), v(ST, 2)))
    A('s_waitcnt lgkmcnt(0)')
    A('s_barrier')
    MS = BF
    for ct in range(4):
        A('ds_read_b64 %s, %s offset:%d' % (v(MS + 4 * ct, 2), v(vT), 256 * ct))
    vSt = vWt
    A('s_mul_i32 s26, s23, %d' % (4 * 114688))
    A('s_lshl_b32 s27, s25, 11')
    A('s_add_u32 s26, s26, s27')
    A('v_lshlrev_b32 %s, 4, %s' % (v(vSt), v(vL)))
    A('v_add_u32 %s, s26, %s' % (v(vSt), v(vSt)))
    A('s_waitcnt lgkmcnt(0)')
    LOG2E = 1.4426950408889634
    for ct in range(4):
        A('v_mul_f32 %s, %s, %s' % (v(MS + 4 * ct + 2), f32(-LOG2E), v(MS + 4 * ct + 1)))
    A.wait_vm(tcs)
    PK = BF + 16
    for ct in range(4):
        mreg = MS + 4 * ct
        g0 = AG + 16 * ct; u0 = AU + 16 * ct
        for i in range(8):
            A('v_pk_fma_f32 %s, %s, %s, %s op_sel_hi:[1,0,1] neg_lo:[0,1,0] neg_hi:[0,1,0]' % (v(g0 + 2 * i, 2), v(CSG + 2 * i, 2), v(mreg, 2), v(g0 + 2 * i, 2)))
            A('v_pk_fma_f32 %s, %s, %s, %s op_sel_hi:[1,0,1] neg_lo:[0,1,0] neg_hi:[0,1,0]' % (v(u0 + 2 * i, 2), v(CSU + 2 * i, 2), v(mreg, 2), v(u0 + 2 * i, 2)))
        for i in range(8):
            A('v_pk_mul_f32 %s, %s, %s op_sel_hi:[1,0]' % (v(g0 + 2 * i, 2), v(g0 + 2 * i, 2), v(mreg + 2, 2)))
            A('v_pk_mul_f32 %s, %s, %s op_sel:[0,1] op_sel_hi:[1,1]' % (v(u0 + 2 * i, 2), v(u0 + 2 * i, 2), v(mreg, 2)))
        for i in range(16):
            A('v_exp_f32 %s, %s' % (v(g0 + i), v(g0 + i)))
        for i in range(8):
            A('v_pk_add_f32 %s, %s, 1.0 op_sel_hi:[1,0]' % (v(g0 + 2 * i, 2), v(g0 + 2 * i, 2)))
        for i in range(16):
            A('v_rcp_f32 %s, %s' % (v(g0 + i), v(g0 + i)))
        for i in range(8):
            A('v_pk_mul_f32 %s, %s, %s' % (v(u0 + 2 * i, 2), v(u0 + 2 * i, 2), v(g0 + 2 * i, 2)))
        p = PK + 8 * (ct & 1)
        for i in range(8):
            A('v_cvt_pk_bf16_f32 %s, %s, %s' % (v(p + i), v(u0 + 2 * i), v(u0 + 2 * i + 1)))
        A('s_mov_b32 s37, %d' % (ct * 114688))
        A('buffer_store_dwordx4 %s, %s, s[32:35], s37 offen' % (v(p, 4), v(vSt)))
        A('buffer_store_dwordx4 %s, %s, s[32:35], s37 offen offset:1024' % (v(p + 4, 4), v(vSt)))
    A.label_nopad('K4_END')
    A('s_endpgm')
    kernels.append(dict(name='k4_kernel', grid=224, block=256, lds=7 * 16384 + 1024, asm=A, nv=256, na=224))

def gen_k5():
    A = Asm(); V = Regs('v', 1, 256)
    A('s_cmp_ge_u32 s2, 224')
    A('s_cbranch_scc1 K5_END')
    A('s_load_dwordx2 s[4:5], s[0:1], %d' % KA_OUT)
    A('s_load_dwordx2 s[6:7], s[0:1], %d' % KA_WS)
    vL = V.alloc(); vT = V.alloc(); vT2 = V.alloc()
    A('v_and_b32 %s, 63, v0' % v(vL))
    A('v_lshrrev_b32 %s, 6, v0' % v(vT))
    A('v_readfirstlane_b32 s20, %s' % v(vT))
    A('s_and_b32 s21, s2, 7')
    A('s_lshr_b32 s22, s2, 3')
    A('s_lshl_b32 s23, s21, 2'); A('s_and_b32 s24, s22, 3'); A('s_add_u32 s23, s23, s24')
    A('s_lshr_b32 s24, s22, 2')
    vA = V.alloc(); vB = V.alloc(); vO = V.alloc()
    A('s_mul_i32 s25, s20, %d' % (28 * 1024))
    A('s_mul_i32 s26, s24, %d' % (2 * 114688)); A('s_add_u32 s26, s26, s25')
    A('s_mul_i32 s27, s23, %d' % (2 * 114688)); A('s_add_u32 s27, s27, s25')
    A('v_lshlrev_b32 %s, 4, %s' % (v(vT), v(vL)))
    A('v_add_u32 %s, s26, %s' % (v(vA), v(vT)))
    A('v_add_u32 %s, s27, %s' % (v(vB), v(vT)))
    A('s_and_b32 s25, s20, 1'); A('s_lshl_b32 s25, s25, 5'); A('s_lshl_b32 s26, s23, 6'); A('s_add_u32 s25, s25, s26')
    A('v_and_b32 %s, 31, %s' % (v(vT), v(vL)))
    A('v_add_u32 %s, s25, %s' % (v(vT), v(vT)))
    A('v_mul_u32_u24 %s, 896, %s' % (v(vT), v(vT)))
    A('s_lshr_b32 s25, s20, 1'); A('s_lshl_b32 s25, s25, 6'); A('s_lshl_b32 s26, s24, 7'); A('s_add_u32 s25, s25, s26')
    A('v_lshrrev_b32 %s, 5, %s' % (v(vT2), v(vL)))
    A('v_lshl_add_u32 %s, %s, 3, %s' % (v(vO), v(vT2), v(vT)))
    A('v_add_u32 %s, s25, %s' % (v(vO), v(vO)))
    A('s_waitcnt lgkmcnt(0)')
    srd(A, 8, 6, WS_WD, SZ_W)
    srd(A, 12, 6, WS_HP, SZ_HP)
    srd(A, 16, 6, WS_H, SZ_H)
    srd(A, 28, 4, 0, S_ * D_ * 2)
    HR = V.alloc(8, 4)
    RING = 14
    tk = {}
    def issue(ks):
        r = 16 * (ks % RING)
        A('s_mov_b32 s36, %d' % (ks * 1024)); A('s_mov_b32 s37, %d' % (ks * 1024 + 114688))
        A('buffer_load_dwordx4 %s, %s, s[8:11], s36 offen' % (a(r, 4), v(vA)))
        A('buffer_load_dwordx4 %s, %s, s[12:15], s36 offen' % (a(r + 8, 4), v(vB)))
        A('buffer_load_dwordx4 %s, %s, s[8:11], s37 offen' % (a(r + 4, 4), v(vA)))
        tk[ks] = A('buffer_load_dwordx4 %s, %s, s[12:15], s37 offen' % (a(r + 12, 4), v(vB)))
    for ks in range(RING):
        issue(ks)
    for q in range(4):
        thr = A('buffer_load_dwordx2 %s, %s, s[16:19], 0 offen offset:%d' % (v(HR + 2 * q, 2), v(vO), 16 * q))
    AC = V.alloc(64, 4)
    for ks in range(28):
        A.wait_vm(tk[ks])
        r = 16 * (ks % RING)
        for aa in range(2):
            for bb in range(2):
                d = AC + 16 * (2 * aa + bb)
                A('v_mfma_f32_32x32x16_bf16 %s, %s, %s, %s' % (v(d, 16), a(r + 4 * aa, 4), a(r + 8 + 4 * bb, 4), '0' if ks == 0 else v(d, 16)))
        if ks + RING < 28:
            issue(ks + RING)
    vW = V.alloc(); vRd = V.alloc()
    A('s_lshl_b32 s25, s20, 14')
    A('v_lshlrev_b32 %s, 4, %s' % (v(vT), v(vL)))
    A('v_add_u32 %s, s25, %s' % (v(vW), v(vT)))
    A('s_lshl_b32 s25, s20, 12')
    A('v_add_u32 %s, s25, %s' % (v(vRd), v(vT)))
    for tl in range(4):
        for q in range(4):
            A('ds_write_b128 %s, %s offset:%d' % (v(vW), v(AC + 16 * tl + 4 * q, 4), tl * 4096 + q * 1024))
    A('s_waitcnt lgkmcnt(0)')
    A('s_barrier')
    RD = V.alloc(64, 4)
    tr = {}
    for q in range(4):
        for w in range(4):
            tr[(q, w)] = A('ds_read_b128 %s, %s offset:%d' % (v(RD + 16 * q + 4 * w, 4), v(vRd), w * 16384 + q * 1024))
    A.wait_vm(thr)
    HU = V.alloc(16, 4); PO = V.alloc(8, 4)
    for i in range(8):
        A('v_lshlrev_b32 %s, 16, %s' % (v(HU + 2 * i), v(HR + i)))
        A('v_and_b32 %s, 0xffff0000, %s' % (v(HU + 2 * i + 1), v(HR + i)))
    for q in range(4):
        A.wait_lg(tr[(q, 3)])
        b = RD + 16 * q
        for hf in range(2):
            A('v_pk_add_f32 %s, %s, %s' % (v(b + 2 * hf, 2), v(b + 2 * hf, 2), v(b + 4 + 2 * hf, 2)))
            A('v_pk_add_f32 %s, %s, %s' % (v(b + 8 + 2 * hf, 2), v(b + 8 + 2 * hf, 2), v(b + 12 + 2 * hf, 2)))
        for hf in range(2):
            A('v_pk_add_f32 %s, %s, %s' % (v(b + 2 * hf, 2), v(b + 2 * hf, 2), v(b + 8 + 2 * hf, 2)))
        for hf in range(2):
            A('v_cvt_pk_bf16_f32 %s, %s, %s' % (v(PO + 2 * q + hf), v(b + 2 * hf), v(b + 2 * hf + 1)))
        for hf in range(2):
            A('v_lshlrev_b32 %s, 16, %s' % (v(b + 2 * hf), v(PO + 2 * q + hf)))
            A('v_and_b32 %s, 0xffff0000, %s' % (v(b + 2 * hf + 1), v(PO + 2 * q + hf)))
        for hf in range(2):
            A('v_pk_add_f32 %s, %s, %s' % (v(b + 2 * hf, 2), v(b + 2 * hf, 2), v(HU + 4 * q + 2 * hf, 2)))
        for hf in range(2):
            A('v_cvt_pk_bf16_f32 %s, %s, %s' % (v(PO + 2 * q + hf), v(b + 2 * hf), v(b + 2 * hf + 1)))
        A('buffer_store_dwordx2 %s, %s, s[28:31], 0 offen offset:%d' % (v(PO + 2 * q, 2), v(vO), 16 * q))
    A.label_nopad('K5_END')
    A('s_endpgm')
    kernels.append(dict(name='k5_kernel', grid=224, block=256, lds=65536, asm=A, nv=256, na=224))

def finish():
    out = []
    hdr = open('cdna_kernels/%s.s.ref' % NAME).read().split('\n')
    for l in hdr:
        if l.startswith(';') and '@launch' not in l and 'Override launch' not in l and 'grid=ceil' not in l:
            out.append(l)
        elif not l.startswith(';'):
            break
    for k in kernels:
        out.append('; @launch kernel=%s grid=(%d,1,1) block=(%d,1,1) lds=%d' % (k['name'], k['grid'], k['block'], k['lds']))
    out.append('.amdgcn_target "amdgcn-amd-amdhsa--gfx950"')
    out.append('.text')
    for k in kernels:
        out.append('.globl %s' % k['name'])
        out.append('.p2align 8')
        out.append('.type %s,@function' % k['name'])
        out.append('%s:' % k['name'])
        out.append(k['asm'].text())
    out.append('.section .rodata,"a"')
    for k in kernels:
        nv = k['nv']; na = k['na']
        acc = (nv + 3) // 4 * 4
        tot = acc + na if na else nv
        out.append('.p2align 6')
        out.append('.amdhsa_kernel %s' % k['name'])
        out.append('  .amdhsa_next_free_vgpr %d' % tot)
        out.append('  .amdhsa_next_free_sgpr 96')
        out.append('  .amdhsa_accum_offset %d' % acc)
        out.append('  .amdhsa_group_segment_fixed_size 0')
        out.append('  .amdhsa_kernarg_size 80')
        out.append('  .amdhsa_user_sgpr_count 2')
        out.append('  .amdhsa_user_sgpr_kernarg_segment_ptr 1')
        out.append('  .amdhsa_system_sgpr_workgroup_id_x 1')
        out.append('.end_amdhsa_kernel')
    return '\n'.join(out) + '\n'

def gen_empty(i, grid=256):
    A = Asm()
    A('s_endpgm')
    kernels.append(dict(name='e%d_kernel' % i, grid=grid, block=256, lds=0, asm=A, nv=8, na=0))

if __name__ == '__main__':
    gen_k1()
    gen_k2()
    gen_k3()
    gen_k4()
    gen_k5()
    import os
    for i in range(int(os.environ.get('NEMPTY', '0'))):
        gen_empty(i)
    txt = finish()
    path = sys.argv[1] if len(sys.argv) > 1 else 'cdna_kernels/%s.s' % NAME
    open(path, 'w').write(txt)
    for k in kernels:
        print(k['name'], 'insts', k['asm'].ninst, 'nops', k['asm'].nops, 'vgpr', k['nv'], 'agpr', k['na'])
```
